```python
import torch

def _softmax(x, axis=-1):
    return torch.softmax(x, dim=axis)
def _gelu(x):
    return torch.nn.functional.gelu(x, approximate="tanh")
def _silu(x):
    return torch.nn.functional.silu(x)
def _sigmoid(x):
    return torch.sigmoid(x)
def _layernorm(x, axis=-1, eps=1e-5):
    m = x.mean(dim=axis, keepdim=True)
    v = x.var(dim=axis, keepdim=True, unbiased=False)
    return (x - m) / torch.sqrt(v + eps)
def _scatter_add(tgt, idx, src, axis=0):
    return tgt.clone().index_add_(axis, idx, src)
def _segment_sum(src, seg, n):
    out = torch.zeros((n,) + src.shape[1:], dtype=src.dtype)
    return out.index_add_(0, seg, src)
def _pad(x, pw):
    flat = tuple(v for pair in reversed(pw) for v in pair)
    return torch.nn.functional.pad(x, flat)

kernel_name = 'gated_mix__spectral_gfnet__dense_activation_mish__prompt'

def setup_inputs():

    _w = (lambda a: (lambda t: t.to(torch.bfloat16) if t.is_floating_point() else t)(torch.as_tensor(a)))
    def _A_setup():
        B, S, D = 1, 2048, 448
        Df = D // 2 + 1
        return {
            "x": _w((lambda *s: torch.randn(*s, dtype=torch.bfloat16) * 0.05)(B, S, D)),
            "w_r": _w((lambda *s: torch.randn(*s, dtype=torch.bfloat16) * 1.6)(S, Df) * 0.02),
            "w_i": _w((lambda *s: torch.randn(*s, dtype=torch.bfloat16) * 1.6)(S, Df) * 0.02),
        }
    _A_in = _A_setup()

    def _B_setup():
        B, S, D, F = 1, 2048, 448, 1792
        return {
            "x": _w((lambda *s: torch.randn(*s, dtype=torch.bfloat16) * 0.05)(B, S, D)),
            "w1": _w((lambda *s: torch.randn(*s, dtype=torch.bfloat16) * 6.4)(D, F) * (D ** -0.5)),
            "b1": _w((lambda *s: torch.randn(*s, dtype=torch.bfloat16) * 0.05)(F)),
            "w2": _w((lambda *s: torch.randn(*s, dtype=torch.bfloat16) * 0.05)(F, D) * (F ** -0.5)),
        }
    _B_in = _B_setup()

    return {
        "A_x": _A_in["x"],
        "A_w_r": _A_in["w_r"],
        "A_w_i": _A_in["w_i"],
        "B_x": _B_in["x"],
        "B_w1": _B_in["w1"],
        "B_b1": _B_in["b1"],
        "B_w2": _B_in["w2"],
        "gate_w": _w((lambda *s: torch.randn(*s, dtype=torch.bfloat16) * 0.05)(448) * 16.0),
    }

def reference(A_x, A_w_r, A_w_i, B_x, B_w1, B_b1, B_w2, gate_w):
    def _A_ref(x, w_r, w_i):
        B, S, D = x.shape
        X = (lambda x, axes=(-2,-1): torch.fft.rfft2(x.float(), dim=axes))(x, axes=(-2, -1))
        W = w_r + 1j * w_i
        X = X * W
        y = (lambda x, s, axes=(-2,-1): torch.fft.irfft2(x, s=s, dim=axes).to(torch.bfloat16))(X, (S, D), axes=(-2, -1))
        return y

    def _B_ref(x, w1, b1, w2):
        h = torch.einsum("bsd,df->bsf", x, w1) + b1
        sp = torch.log1p(torch.exp(-torch.abs(h))) + torch.where(h > 0, h, torch.zeros_like(h))
        act = h * torch.tanh(sp)
        return torch.einsum("bsf,fd->bsd", act, w2)

    x = A_x
    g = _sigmoid((x * gate_w).sum(-1, keepdims=True))
    a = _A_ref(x, A_w_r, A_w_i)
    b = _B_ref(x, B_w1, B_b1, B_w2)
    return g * a + (1 - g) * b
```

```python
import re

TRANS = ("v_exp_f32", "v_log_f32", "v_rcp_f32", "v_rsq_f32", "v_sqrt_f32", "v_sin_f32", "v_cos_f32",
         "v_rcp_iflag_f32")

_reg_re = re.compile(r"^(-?)(?:abs\()?([vas])(?:(\d+)|\[(\d+):(\d+)\])\)?$")


def parse_reg(tok):
    tok = tok.strip()
    if tok in ("vcc", "vcc_lo", "vcc_hi"):
        return [("vcc", 0)]
    if tok in ("exec", "exec_lo", "exec_hi"):
        return [("exec", 0)]
    if tok == "m0":
        return [("m0", 0)]
    m = _reg_re.match(tok)
    if not m:
        return []
    k = m.group(2)
    if m.group(3) is not None:
        return [(k, int(m.group(3)))]
    return [(k, i) for i in range(int(m.group(4)), int(m.group(5)) + 1)]


class Ins:
    __slots__ = ("text", "op", "ops", "mods", "rd", "wr", "cls", "passes", "srcc", "srcab", "ws", "target")

    def __init__(self, text):
        self.text = text
        body = text.split(";")[0].strip()
        parts = body.split(None, 1)
        self.op = parts[0]
        rest = parts[1] if len(parts) > 1 else ""
        toks, depth, cur = [], 0, ""
        for ch in rest:
            if ch in "[(":
                depth += 1
            if ch in "])":
                depth -= 1
            if ch == "," and depth == 0:
                toks.append(cur.strip())
                cur = ""
            else:
                cur += ch
        if cur.strip():
            toks.append(cur.strip())
        mods = ""
        if toks:
            last = toks[-1].split(None, 1)
            if len(last) > 1:
                toks[-1] = last[0]
                mods = last[1]
        self.ops, self.mods = toks, mods
        op = self.op
        self.rd, self.wr = set(), set()
        self.passes = 0
        self.srcc, self.srcab = set(), set()
        self.ws = 1
        self.target = None
        R = [parse_reg(t) for t in toks]
        if op.startswith("v_mfma"):
            self.cls = "mfma"
            self.passes = 8 if "32x32x16" in op else 4
            assert "32x32x16" in op or "16x16x32" in op, op
            self.wr = set(R[0])
            self.srcab = set(R[1]) | set(R[2])
            self.srcc = set(R[3])
            self.rd = self.srcab | self.srcc
        elif op.startswith("v_"):
            self.cls = "valu"
            nd = 1
            if op.startswith(("v_add_co", "v_sub_co", "v_addc_co", "v_subb_co", "v_mad_u64", "v_div_scale")):
                nd = 2
            for r in R[:nd]:
                self.wr |= set(r)
            for r in R[nd:]:
                self.rd |= set(r)
            if op.startswith(("v_permlane16_swap", "v_permlane32_swap", "v_swap")):
                self.wr |= set(R[1])
                self.rd |= set(R[0])
            if op.startswith(("v_fmac", "v_dot2c", "v_pk_fmac", "v_writelane")):
                self.rd |= set(R[0])
            if op.startswith("v_cmpx"):
                self.wr.add(("exec", 0))
        elif op.startswith(("buffer_", "global_")):
            self.cls = "vmem"
            if op.startswith(("buffer_inv", "buffer_wbl2")):
                pass
            elif "load" in op and not re.search(r"\blds\b", mods) and "load_lds" not in op:
                self.wr = set(R[0])
                for r in R[1:]:
                    self.rd |= set(r)
                if "d16" in op:
                    self.rd |= set(R[0])
            else:
                for r in R:
                    self.rd |= set(r)
                if re.search(r"\blds\b", mods) or "load_lds" in op:
                    self.rd.add(("m0", 0))
                if "atomic" in op and "sc0" in mods:
                    self.wr = set(R[0])
        elif op.startswith("ds_"):
            self.cls = "ds"
            if op.startswith(("ds_read", "ds_bpermute", "ds_permute", "ds_swizzle")):
                self.wr = set(R[0])
                for r in R[1:]:
                    self.rd |= set(r)
                if "d16" in op:
                    self.rd |= set(R[0])
            else:
                for r in R:
                    self.rd |= set(r)
        elif op.startswith("s_"):
            self.cls = "salu"
            if op == "s_nop":
                self.ws = int(toks[0], 0) + 1
            elif op.startswith(("s_branch", "s_cbranch")):
                self.target = toks[0]
            elif op.startswith(("s_cmp", "s_waitcnt", "s_barrier", "s_endpgm", "s_sleep", "s_setprio", "s_bitcmp")):
                for r in R:
                    self.rd |= set(r)
            else:
                self.wr = set(R[0]) if R else set()
                for r in R[1:]:
                    self.rd |= set(r)
                if "saveexec" in op:
                    self.wr.add(("exec", 0))
        else:
            raise ValueError("unknown op: " + text)

    def is_trans(self):
        return self.op.replace("_e32", "").replace("_e64", "") in TRANS


def vg(s):
    return {r for r in s if r[0] in ("v", "a")}


def sg(s):
    return {r for r in s if r[0] in ("s", "vcc")}


def need(p, c):
    n = 0
    if p.cls == "valu":
        wv = vg(p.wr)
        if c.cls == "mfma" and wv & c.rd:
            n = max(n, 2)
        if c.cls == "valu":
            if p.is_trans() and wv & c.rd and not c.is_trans():
                n = max(n, 1)
            if p.is_trans() and wv & c.rd:
                n = max(n, 1)
            if c.op.startswith("v_permlane") and wv & c.rd:
                n = max(n, 2)
            if c.op.startswith(("v_readlane", "v_readfirstlane")) and wv & c.rd:
                n = max(n, 1)
            if "dpp" in c.op or "row_" in c.mods or "quad_perm" in c.mods:
                if wv & c.rd:
                    n = max(n, 2)
                if ("exec", 0) in p.wr:
                    n = max(n, 5)
            if ("sdwa" in p.op or "op_sel" in p.mods) and wv & (c.rd | c.wr) and not p.op.startswith("v_pk_"):
                n = max(n, 1)
            ws = sg(p.wr)
            crd = set(c.rd)
            if c.op.startswith(("v_cndmask", "v_addc_co", "v_subb_co", "v_div_fmas")) and len(c.ops) <= 3:
                crd.add(("vcc", 0))
            if ws & crd:
                n = max(n, 4 if c.op.startswith(("v_readlane", "v_writelane", "v_div_fmas")) else 2)
            if ("exec", 0) in p.wr and c.op.startswith(("v_readlane", "v_readfirstlane", "v_writelane", "v_permlane")):
                n = max(n, 4)
        if c.cls == "vmem" and sg(p.wr) & c.rd:
            n = max(n, 5)
        if c.cls == "mfma" and ("exec", 0) in p.wr:
            n = max(n, 4)
        if c.cls == "salu" and sg(p.wr) & c.rd:
            n = max(n, 1)
    if p.cls == "mfma":
        big = {4: 8, 8: 12}[p.passes]
        if c.cls == "mfma":
            if p.wr & c.srcab:
                n = max(n, big)
            if p.wr & c.srcc:
                if not (p.wr == c.srcc and p.passes == c.passes):
                    n = max(n, {4: 6, 8: 10}[p.passes])
            elif p.wr & c.wr:
                n = max(n, {4: 6, 8: 10}[p.passes])
        elif c.cls in ("valu", "vmem", "ds"):
            if p.wr & (c.rd | c.wr):
                n = max(n, big)
            if c.cls == "valu" and p.srcc & c.wr:
                n = max(n, {4: 3, 8: 7}[p.passes])
    if p.cls == "salu":
        if ("m0", 0) in p.wr and ("m0", 0) in c.rd and c.cls in ("vmem", "ds"):
            n = max(n, 1)
    if p.cls == "vmem" and ("store_dwordx4" in p.op or "store_dwordx3" in p.op):
        data = set(parse_reg(p.ops[0])) if p.op.startswith("buffer_") else set(parse_reg(p.ops[1]))
        if data & c.wr:
            n = max(n, 2 if c.cls == "valu" else 1)
    return n


WINDOW = 20


class Prog:
    def __init__(self):
        self.items = []

    def __call__(self, text):
        for line in text.strip().split("\n"):
            line = line.strip()
            if not line or line.startswith(";"):
                continue
            if line.endswith(":") or line.startswith("."):
                self.items.append(line)
            else:
                self.items.append(Ins(line))

    def raw(self, text):
        self.items.append(text)

    def comment(self, text):
        self.items.append("; " + text)

    @staticmethod
    def _required(hist, ins):
        dist = 0
        extra = 0
        for p in reversed(hist):
            n = need(p, ins)
            if n > dist:
                extra = max(extra, n - dist)
            dist += p.ws
            if dist >= WINDOW:
                break
        return extra

    @staticmethod
    def _nops(n):
        out = []
        while n > 0:
            k = min(n, 16)
            out.append(Ins("s_nop %d" % (k - 1)))
            n -= k
        return out

    def resolve(self):
        out, hist = [], []
        for it in self.items:
            if isinstance(it, Ins):
                e = self._required(hist, it)
                for nop in self._nops(e):
                    out.append(nop)
                    hist.append(nop)
                out.append(it)
                hist.append(it)
                if it.op in ("s_branch", "s_endpgm"):
                    hist = []
                hist = hist[-WINDOW:]
            else:
                out.append(it)
        changed = True
        while changed:
            changed = False
            labels = {it[:-1]: i for i, it in enumerate(out) if isinstance(it, str) and it.endswith(":")}
            for i, it in enumerate(out):
                if isinstance(it, Ins) and it.target:
                    hist = [x for x in out[max(0, i - 3 * WINDOW):i + 1] if isinstance(x, Ins)][-WINDOW:]
                    j = labels[it.target]
                    dist = 0
                    while j < len(out) and dist < WINDOW:
                        x = out[j]
                        if isinstance(x, Ins):
                            e = self._required(hist, x)
                            if e:
                                out[j:j] = self._nops(e)
                                changed = True
                                break
                            hist.append(x)
                            dist += x.ws
                            if x.op in ("s_branch", "s_endpgm"):
                                break
                        j += 1
                    if changed:
                        break
        self.items = out

    def text(self):
        lines = []
        for it in self.items:
            if isinstance(it, Ins):
                lines.append("    " + it.text)
            else:
                lines.append(it)
        return "\n".join(lines) + "\n"


def v(a, n=1):
    return "v%d" % a if n == 1 else "v[%d:%d]" % (a, a + n - 1)


def a(x, n=1):
    return "a%d" % x if n == 1 else "a[%d:%d]" % (x, x + n - 1)


def s(x, n=1):
    return "s%d" % x if n == 1 else "s[%d:%d]" % (x, x + n - 1)


import struct


def f32(x):
    return "0x%08x" % struct.unpack("<I", struct.pack("<f", x))[0]
```

```python
import math
import sys
from asmlib import Prog, v, a, s, f32

NAME = "gated_mix__spectral_gfnet__dense_activation_mish__prompt"
S_, D_, F_ = 2048, 448, 1792
WS_XD, WS_WT, WS_V, WS_G, WS_ACT = 0, 2 << 20, 4 << 20, 6 << 20, 8 << 20
LOG2E = 1.4426950408889634

HEADER = """; Kernarg layout for this problem (88 bytes, ptrs only, base s[0:1]):
"""


def srd(P, d, b, nbytes, off=0):
    if off:
        P(f"s_add_u32 {s(d)}, {s(b)}, {off}")
        P(f"s_addc_u32 {s(d+1)}, {s(b+1)}, 0")
    else:
        P(f"s_mov_b32 {s(d)}, {s(b)}")
        P(f"s_mov_b32 {s(d+1)}, {s(b+1)}")
    P(f"s_mov_b32 {s(d+2)}, {nbytes}")
    P(f"s_mov_b32 {s(d+3)}, 0x00020000")


def kd(name, vgpr, sgpr, accum):
    return f""".amdhsa_kernel {name}
  .amdhsa_next_free_vgpr {vgpr}
  .amdhsa_next_free_sgpr {sgpr}
  .amdhsa_accum_offset {accum}
  .amdhsa_group_segment_fixed_size 0
  .amdhsa_kernarg_size 88
  .amdhsa_user_sgpr_count 2
  .amdhsa_user_sgpr_kernarg_segment_ptr 1
  .amdhsa_system_sgpr_workgroup_id_x 1
.end_amdhsa_kernel
"""


def entry(P, name):
    P.raw(f".globl {name}")
    P.raw(".p2align 8")
    P.raw(f".type {name},@function")
    P.raw(f"{name}:")


P1_TAB = 102400
P1_LDS = 160256


def p1(P):
    L = "p1"
    entry(P, "p1_kernel")
    X_, W1_, B1_, XD_, ACT_, WR_, WI_, GW_, WT_, G_ = 20, 24, 28, 32, 36, 40, 44, 48, 52, 56
    sW, sQ, sRB, sT0, sT1, sSG, sSWAP = 60, 61, 62, 63, 64, 65, 66
    sXO, sW1O, sC0 = 67, 68, 70
    vL, vN, vG4, vX0, vX1, vA0, vA1, vT = 1, 2, 3, 4, 5, 6, 7, 8
    X, ACC, DACC, WF = 16, 128, 184, 200

    def xr(t, kb):
        return X + (kb * 2 + t) * 4

    def acc(ft, t):
        return ACC + (ft * 2 + t) * 4

    P(f"s_cmp_ge_u32 s2, 256")
    P(f"s_cbranch_scc1 {L}_end")
    P("s_load_dwordx4 s[4:7], s[0:1], 0")
    P("s_load_dwordx2 s[8:9], s[0:1], 16")
    P("s_load_dwordx4 s[12:15], s[0:1], 32")
    P("s_load_dwordx2 s[16:17], s[0:1], 56")
    P("s_load_dwordx2 s[18:19], s[0:1], 80")
    P(f"v_lshrrev_b32 {v(vT)}, 6, v0")
    P(f"v_and_b32 {v(vL)}, 63, v0")
    P(f"v_readfirstlane_b32 {s(sW)}, {v(vT)}")
    P(f"v_and_b32 {v(vN)}, 15, v0")
    P(f"v_lshrrev_b32 {v(vG4)}, 4, {v(vL)}")
    P(f"s_and_b32 {s(sT0)}, s2, 3")
    P(f"s_lshl_b32 {s(sT0)}, {s(sT0)}, 2")
    P(f"s_lshr_b32 {s(sT1)}, s2, 3")
    P(f"s_and_b32 {s(sQ)}, {s(sT1)}, 3")
    P(f"s_add_u32 {s(sQ)}, {s(sQ)}, {s(sT0)}")
    P(f"s_lshr_b32 {s(sRB)}, {s(sT1)}, 2")
    P(f"s_and_b32 {s(sT0)}, s2, 4")
    P(f"s_lshl_b32 {s(sT0)}, {s(sT0)}, 1")
    P(f"s_add_u32 {s(sRB)}, {s(sRB)}, {s(sT0)}")
    P(f"s_lshl_b32 {s(sSG)}, {s(sRB)}, 2")
    P(f"s_add_u32 {s(sSG)}, {s(sSG)}, {s(sW)}")
    P(f"s_cmp_eq_u32 {s(sQ)}, 15")
    P(f"s_cselect_b32 {s(sSWAP)}, 1, 0")
    P(f"s_and_b32 {s(sT0)}, {s(sSG)}, 15")
    P(f"s_lshl_b32 {s(sT0)}, {s(sT0)}, 1")
    P(f"s_lshr_b32 {s(sT1)}, {s(sSG)}, 4")
    P(f"s_lshl_b32 {s(sT1)}, {s(sT1)}, 9")
    P(f"s_add_u32 {s(sT0)}, {s(sT0)}, {s(sT1)}")
    P(f"s_mul_i32 {s(sXO)}, {s(sT0)}, 896")
    P(f"v_mul_u32_u24 {v(vX0)}, 28672, {v(vN)}")
    P(f"v_lshl_add_u32 {v(vX0)}, {v(vG4)}, 4, {v(vX0)}")
    P(f"s_mul_i32 {s(sT0)}, {s(sSWAP)}, 896")
    P(f"s_sub_u32 {s(sT1)}, 896, {s(sT0)}")
    P(f"v_add_u32 {v(vX1)}, {s(sT1)}, {v(vX0)}")
    P(f"v_add_u32 {v(vX0)}, {s(sT0)}, {v(vX0)}")
    P("s_waitcnt lgkmcnt(0)")
    srd(P, X_, 4, S_ * D_ * 2)
    for kb in range(14):
        for t in range(2):
            P(f"buffer_load_dwordx4 {v(xr(t, kb), 4)}, {v(vX0 + t)}, {s(X_, 4)}, {s(sXO)} offen offset:{kb * 64}")
    srd(P, W1_, 12, D_ * F_ * 2)
    srd(P, B1_, 14, F_ * 2)
    BR = WF + 28
    P(f"s_mul_i32 {s(sW1O)}, {s(sQ)}, 224")
    P(f"v_lshlrev_b32 {v(vT)}, 3, {v(vG4)}")
    for ft in range(7):
        P(f"buffer_load_dwordx2 {v(BR + 2 * ft, 2)}, {v(vT)}, {s(B1_, 4)}, {s(sW1O)} offen offset:{ft * 32}")
    DA = WF
    t0, t1, t2 = WF + 8, WF + 9, WF + 10
    P(f"s_movk_i32 {s(sT0)}, 4682")
    P(f"s_movk_i32 {s(sT1)}, 3584")
    for m in range(7):
        P(f"v_add_u32 {v(t0)}, {256 * m}, v0")
        P(f"v_mul_u32_u24 {v(t1)}, {s(sT0)}, {v(t0)}")
        P(f"v_lshrrev_b32 {v(t1)}, 16, {v(t1)}")
        P(f"v_mul_u32_u24 {v(t2)}, 14, {v(t1)}")
        P(f"v_sub_u32 {v(t0)}, {v(t0)}, {v(t2)}")
        P(f"v_and_b32 {v(t2)}, 0x63, {v(t1)}")
        P(f"v_and_b32 {v(DA + m)}, 12, {v(t1)}")
        P(f"v_lshl_add_u32 {v(t2)}, {v(DA + m)}, 1, {v(t2)}")
        P(f"v_bfe_u32 {v(t1)}, {v(t1)}, 4, 1")
        P(f"v_lshl_add_u32 {v(t2)}, {v(t1)}, 2, {v(t2)}")
        P(f"v_lshlrev_b32 {v(t0)}, 4, {v(t0)}")
        P(f"v_mad_u32_u24 {v(DA + m)}, {v(t2)}, {s(sT1)}, {v(t0)}")
    P(f"s_lshl_b32 {s(sT0)}, {s(sW)}, 10")
    for g in range(4):
        for m in range(7 if g < 3 else 4):
            P(f"s_add_u32 m0, {s(sT0)}, {g * 28672 + m * 4096}")
            P(f"buffer_load_dwordx4 {v(DA + m)}, {s(W1_, 4)}, {s(sW1O)} offen lds")
        if g < 3:
            P(f"s_add_u32 {s(sW1O)}, {s(sW1O)}, {128 * 3584}")
    srd(P, XD_, 18, 224 * 8192, WS_XD)
    srd(P, ACT_, 18, 64 * 112 * 1024, WS_ACT)
    P(f"v_lshrrev_b32 {v(vA0)}, 2, {v(vL)}")
    P(f"v_mul_u32_u24 {v(vA0)}, 224, {v(vA0)}")
    P(f"v_and_b32 {v(vT)}, 3, {v(vL)}")
    P(f"v_lshl_add_u32 {v(vA0)}, {v(vT)}, 3, {v(vA0)}")
    P(f"v_add_u32 {v(vA1)}, {7 * 7168}, {v(vA0)}")
    P(f"s_cmp_ge_u32 {s(sQ)}, 14")
    P(f"s_cbranch_scc1 {L}_side")

    kf, df, vTA = WF, WF + 1, WF + 2
    tc, ts, an = WF + 4, WF + 12, WF + 20
    P(f"s_lshl_b32 {s(sT0)}, {s(sQ)}, 4")
    P(f"v_add_u32 {v(kf)}, {s(sT0)}, {v(vN)}")
    P(f"v_cmp_eq_u32 s[72:73], 0, {v(kf)}")
    P(f"v_cvt_f32_u32 {v(kf)}, {v(kf)}")
    P(f"v_mul_f32 {v(kf)}, {f32(1.0 / 448)}, {v(kf)}")
    P(f"s_lshl_b32 {s(sT0)}, {s(sW)}, 5")
    P(f"v_lshl_add_u32 {v(df)}, {v(vG4)}, 3, {s(sT0)}")
    P(f"v_cvt_f32_u32 {v(df)}, {v(df)}")
    P(f"s_lshl_b32 {s(sT0)}, {s(sW)}, 11")
    P(f"s_add_u32 {s(sT0)}, {s(sT0)}, {P1_TAB}")
    P(f"v_lshl_add_u32 {v(vTA)}, {v(vL)}, 4, {s(sT0)}")
    P(f"v_mov_b32 {v(WF + 3)}, 0xbf803f80")
    P(f"s_mov_b32 {s(sT1)}, 0")
    P(f"{L}_tab:")
    P(f"v_mul_f32 {v(an)}, {v(df)}, {v(kf)}")
    for j in range(1, 8):
        P(f"v_add_f32 {v(an + j)}, {float(j) if j in (1, 2, 4) else f32(float(j))}, {v(df)}")
        P(f"v_mul_f32 {v(an + j)}, {v(an + j)}, {v(kf)}")
    for j in range(8):
        P(f"v_cos_f32 {v(tc + j)}, {v(an + j)}")
        P(f"v_sin_f32 {v(ts + j)}, {v(an + j)}")
    for j in range(4):
        P(f"v_cvt_pk_bf16_f32 {v(tc + j)}, {v(tc + 2 * j)}, {v(tc + 2 * j + 1)}")
    for j in range(4):
        P(f"v_cvt_pk_bf16_f32 {v(ts + j)}, -{v(ts + 2 * j)}, -{v(ts + 2 * j + 1)}")
    for j in range(4):
        P(f"v_cndmask_b32 {v(ts + j)}, {v(ts + j)}, {v(WF + 3)}, s[72:73]")
    P(f"ds_write_b128 {v(vTA)}, {v(tc, 4)}")
    P(f"ds_write_b128 {v(vTA)}, {v(ts, 4)} offset:1024")
    P(f"v_add_f32 {v(df)}, {f32(128.0)}, {v(df)}")
    P(f"v_add_u32 {v(vTA)}, 8192, {v(vTA)}")
    P(f"s_add_u32 {s(sT1)}, {s(sT1)}, 1")
    P(f"s_cmp_lt_u32 {s(sT1)}, 4")
    P(f"s_cbranch_scc1 {L}_tab")
    P(f"v_lshlrev_b32 {v(vTA)}, 4, {v(vL)}")
    P(f"v_add_u32 {v(vTA)}, {P1_TAB}, {v(vTA)}")
    P("s_waitcnt lgkmcnt(0)")
    P("s_barrier")
    TF = WF + 4

    def tf(kb, cs):
        return TF + ((kb % 3) * 2 + cs) * 4

    def rd(kb):
        for cs in range(2):
            P(f"ds_read_b128 {v(tf(kb, cs), 4)}, {v(vTA)} offset:{(kb * 2 + cs) * 1024}")

    rd(0)
    rd(1)
    for kb in range(14):
        if kb + 2 < 14:
            rd(kb + 2)
        rem = 2 * min(2, 13 - kb)
        P(f"s_waitcnt vmcnt({60 - 2 * (kb + 1)}) lgkmcnt({rem})")
        for t in range(2):
            for cs in range(2):
                d = DACC + (t * 2 + cs) * 4
                c = "0" if kb == 0 else v(d, 4)
                P(f"v_mfma_f32_16x16x32_bf16 {v(d, 4)}, {v(xr(t, kb), 4)}, {v(tf(kb, cs), 4)}, {c}")
    P(f"v_lshlrev_b32 {v(vT)}, 13, {v(vN)}")
    P(f"v_lshl_add_u32 {v(vT)}, {v(vG4)}, 4, {v(vT)}")
    P(f"s_lshl_b32 {s(sT0)}, {s(sQ)}, 17")
    P(f"s_lshl_b32 {s(sT1)}, {s(sSG)}, 7")
    P(f"s_add_u32 {s(sT0)}, {s(sT0)}, {s(sT1)}")
    for t in range(2):
        re, im = DACC + t * 8, DACC + t * 8 + 4
        for r in range(4):
            P(f"v_cvt_pk_bf16_f32 {v(re + r)}, {v(re + r)}, {v(im + r)}")
        P(f"buffer_store_dwordx4 {v(re, 4)}, {v(vT)}, {s(XD_, 4)}, {s(sT0)} offen offset:{t * 64}")
    P(f"s_branch {L}_gemm")

    P(f"{L}_side:")
    srd(P, WR_, 6, S_ * 225 * 2)
    srd(P, WI_, 8, S_ * 225 * 2)
    srd(P, GW_, 16, D_ * 2)
    srd(P, WT_, 18, 225 * 8192, WS_WT)
    srd(P, G_, 18, S_ * 4, WS_G)
    sU, sRO = 75, 76
    P(f"s_lshl_b32 {s(sU)}, {s(sRB)}, 1")
    P(f"s_add_u32 {s(sU)}, {s(sU)}, {s(sSWAP)}")
    P(f"s_and_b32 {s(sT0)}, {s(sU)}, 7")
    P(f"s_lshl_b32 {s(sT0)}, {s(sT0)}, 2")
    P(f"s_add_u32 {s(sT0)}, {s(sT0)}, {s(sW)}")
    P(f"s_lshl_b32 {s(sT0)}, {s(sT0)}, 2")
    P(f"s_lshr_b32 {s(sT1)}, {s(sU)}, 3")
    P(f"s_add_u32 {s(sT0)}, {s(sT0)}, {s(sT1)}")
    P(f"s_mul_i32 {s(sRO)}, {s(sT0)}, 7200")
    P(f"v_lshlrev_b32 {v(vT)}, 4, {v(vL)}")
    P(f"s_mul_i32 {s(sT0)}, {s(sW)}, 7200")
    P(f"s_add_u32 {s(sT0)}, {s(sT0)}, {P1_TAB}")
    for arr, sr in ((0, WR_), (1, WI_)):
        for half in range(2):
            P(f"s_add_u32 m0, {s(sT0)}, {arr * 28800 + half * 4096}")
            P(f"s_add_u32 {s(sT1)}, {s(sRO)}, {half * 4096}")
            for i in range(4):
                if half == 1 and i == 3:
                    P("s_mov_b64 exec, 3")
                P(f"buffer_load_dwordx4 {v(vT)}, {s(sr, 4)}, {s(sT1)} offen offset:{i * 1024} lds")
                if half == 1 and i == 3:
                    P("s_mov_b64 exec, -1")
    GWR = ACC
    P(f"v_lshlrev_b32 {v(vT)}, 4, {v(vG4)}")
    for kb in range(14):
        P(f"buffer_load_dwordx4 {v(GWR + 4 * kb, 4)}, {v(vT)}, {s(GW_, 4)}, 0 offen offset:{kb * 64}")
    ones, pr, xa, ga = WF, WF + 4, WF + 12, WF + 16
    for j in range(4):
        P(f"v_mov_b32 {v(ones + j)}, 0x3f803f80")
    P(f"s_mov_b32 {s(sT1)}, 0xffff0000")
    P("s_waitcnt vmcnt(0)")
    P("s_barrier")
    for kb in range(14):
        p4 = pr + 4 * (kb & 1)
        for j in range(4):
            xx, gg = xa + 2 * (j & 1), ga + 2 * (j & 1)
            P(f"v_lshlrev_b32 {v(xx)}, 16, {v(xr(0, kb) + j)}")
            P(f"v_and_b32 {v(xx + 1)}, {s(sT1)}, {v(xr(0, kb) + j)}")
            P(f"v_lshlrev_b32 {v(gg)}, 16, {v(GWR + 4 * kb + j)}")
            P(f"v_and_b32 {v(gg + 1)}, {s(sT1)}, {v(GWR + 4 * kb + j)}")
            P(f"v_pk_mul_f32 {v(xx, 2)}, {v(xx, 2)}, {v(gg, 2)}")
            P(f"v_cvt_pk_bf16_f32 {v(p4 + j)}, {v(xx)}, {v(xx + 1)}")
        c = "0" if kb == 0 else v(DACC, 4)
        P(f"v_mfma_f32_16x16x32_bf16 {v(DACC, 4)}, {v(ones, 4)}, {v(p4, 4)}, {c}")
    z = DACC
    P(f"v_cvt_pk_bf16_f32 {v(z)}, {v(z)}, {v(z)}")
    P(f"v_lshlrev_b32 {v(z)}, 16, {v(z)}")
    P(f"v_mul_f32 {v(z)}, {f32(-LOG2E)}, {v(z)}")
    P(f"v_exp_f32 {v(z)}, {v(z)}")
    P(f"v_add_f32 {v(z)}, 1.0, {v(z)}")
    P(f"v_rcp_f32 {v(z)}, {v(z)}")
    P(f"v_cvt_pk_bf16_f32 {v(z)}, {v(z)}, {v(z)}")
    P(f"v_lshlrev_b32 {v(z)}, 16, {v(z)}")
    P(f"s_lshl_b32 {s(sT0)}, {s(sSG)}, 7")
    P(f"s_lshl_b32 {s(sT1)}, {s(sSWAP)}, 6")
    P(f"s_add_u32 {s(sT0)}, {s(sT0)}, {s(sT1)}")
    P(f"v_lshlrev_b32 {v(vT)}, 2, {v(vN)}")
    P(f"buffer_store_dword {v(z)}, {v(vT)}, {s(G_, 4)}, {s(sT0)} offen")
    la, ga_, o = WF, WF + 1, WF + 4
    P(f"s_lshl_b32 {s(sT0)}, {s(sW)}, 2")
    P(f"v_add_u32 {v(vT)}, {s(sT0)}, {v(vG4)}")
    P(f"v_mul_u32_u24 {v(la)}, 450, {v(vN)}")
    P(f"v_lshl_add_u32 {v(la)}, {v(vT)}, 1, {v(la)}")
    P(f"v_add_u32 {v(la)}, {P1_TAB}, {v(la)}")
    P(f"v_lshlrev_b32 {v(ga_)}, 13, {v(vT)}")
    P(f"v_lshl_add_u32 {v(ga_)}, {v(vN)}, 4, {v(ga_)}")
    P(f"s_lshl_b32 {s(sT0)}, {s(sU)}, 8")
    P(f"s_mov_b32 {s(sT1)}, 0")
    P(f"{L}_wt:")
    for i in range(3):
        for r in range(4):
            P(f"ds_read_u16 {v(o + 4 * i + r)}, {v(la)} offset:{r * 7200 + 32 * i}")
            P(f"ds_read_u16 {v(o + 12 + 4 * i + r)}, {v(la)} offset:{28800 + r * 7200 + 32 * i}")
    P(f"v_add_u32 {v(la)}, 96, {v(la)}")
    for i in range(3):
        P(f"s_waitcnt lgkmcnt({min(15, 16 - 8 * i)})")
        for r in range(4):
            P(f"v_lshl_or_b32 {v(o + 4 * i + r)}, {v(o + 12 + 4 * i + r)}, 16, {v(o + 4 * i + r)}")
        P(f"buffer_store_dwordx4 {v(o + 4 * i, 4)}, {v(ga_)}, {s(WT_, 4)}, {s(sT0)} offen")
        P(f"s_add_u32 {s(sT0)}, {s(sT0)}, {16 * 8192}")
    P(f"s_add_u32 {s(sT1)}, {s(sT1)}, 1")
    P(f"s_cmp_lt_u32 {s(sT1)}, 5")
    P(f"s_cbranch_scc1 {L}_wt")

    P(f"{L}_gemm:")
    P("s_waitcnt vmcnt(20)")
    for ft in range(7):
        for t in range(2):
            d = acc(ft, t)
            P(f"v_lshlrev_b32 {v(d)}, 16, {v(BR + 2 * ft)}")
            P(f"v_and_b32 {v(d + 1)}, 0xffff0000, {v(BR + 2 * ft)}")
            P(f"v_lshlrev_b32 {v(d + 2)}, 16, {v(BR + 2 * ft + 1)}")
            P(f"v_and_b32 {v(d + 3)}, 0xffff0000, {v(BR + 2 * ft + 1)}")
    P("s_barrier")

    def wrd(kb, ft):
        base = vA0 if kb < 7 else vA1
        off = (kb % 7) * 7168 + ft * 32
        P(f"ds_read_b64_tr_b16 {v(WF + 4 * ft, 2)}, {v(base)} offset:{off}")
        P(f"ds_read_b64_tr_b16 {v(WF + 4 * ft + 2, 2)}, {v(base)} offset:{off + 3584}")

    for ft in range(7):
        wrd(0, ft)
    for kb in range(14):
        if kb in (3, 7, 11):
            P(f"s_waitcnt vmcnt({ {3: 13, 7: 6, 11: 2}[kb] })")
            P("s_barrier")
        for ft in range(7):
            n = 12 if kb < 13 else 2 * (6 - ft)
            P(f"s_waitcnt lgkmcnt({n})")
            for t in range(2):
                P(f"v_mfma_f32_16x16x32_bf16 {v(acc(ft, t), 4)}, {v(WF + 4 * ft, 4)}, {v(xr(t, kb), 4)}, {v(acc(ft, t), 4)}")
            if kb < 13:
                wrd(kb + 1, ft)
    P(f"s_mov_b32 {s(sC0)}, {f32(-LOG2E)}")
    P(f"s_mov_b32 {s(sC0 + 1)}, {f32(-LOG2E)}")
    P(f"s_lshl_b32 {s(sT0)}, {s(sSWAP)}, 4")
    P(f"v_xor_b32 {v(vT)}, {s(sT0)}, {v(vL)}")
    P(f"v_lshlrev_b32 {v(vT)}, 4, {v(vT)}")
    P(f"s_mul_i32 {s(sT0)}, {s(sSG)}, 112")
    P(f"s_mul_i32 {s(sT1)}, {s(sQ)}, 7")
    P(f"s_add_u32 {s(sT0)}, {s(sT0)}, {s(sT1)}")
    P(f"s_lshl_b32 {s(sT0)}, {s(sT0)}, 10")
    P(f"s_add_u32 {s(sT1)}, {s(sT0)}, 4096")
    for ft in range(7):
        h = acc(ft, 0)
        u = X + (ft % 2) * 24
        dn = u + 8
        o = u + 16
        for i in range(4):
            P(f"v_pk_fma_f32 {v(u + 2 * i, 2)}, {v(h + 2 * i, 2)}, {s(sC0, 2)}, 1.0 op_sel_hi:[1,1,0]")
        for i in range(8):
            P(f"v_exp_f32 {v(u + i)}, {v(u + i)}")
        for i in range(4):
            P(f"v_pk_add_f32 {v(u + 2 * i, 2)}, {v(u + 2 * i, 2)}, 1.0 op_sel_hi:[1,0]")
        for i in range(4):
            P(f"v_pk_fma_f32 {v(dn + 2 * i, 2)}, {v(u + 2 * i, 2)}, {v(u + 2 * i, 2)}, 1.0 op_sel_hi:[1,1,0]")
        for i in range(8):
            P(f"v_rcp_f32 {v(dn + i)}, {v(dn + i)}")
        for i in range(4):
            P(f"v_pk_mul_f32 {v(u + 2 * i, 2)}, {v(u + 2 * i, 2)}, {v(dn + 2 * i, 2)} clamp")
        for i in range(4):
            P(f"v_pk_mul_f32 {v(u + 2 * i, 2)}, {v(u + 2 * i, 2)}, {v(h + 2 * i, 2)}")
        for i in range(4):
            P(f"v_cvt_pk_bf16_f32 {v(o + i)}, {v(u + 2 * i)}, {v(u + 2 * i + 1)}")
        P(f"v_permlane16_swap_b32 {v(o)}, {v(o + 2)}")
        P(f"v_permlane16_swap_b32 {v(o + 1)}, {v(o + 3)}")
        so, io = (sT0, ft * 1024) if ft < 4 else (sT1, (ft - 4) * 1024)
        P(f"buffer_store_dwordx4 {v(o, 4)}, {v(vT)}, {s(ACT_, 4)}, {s(so)} offen offset:{io}")
    P(f"{L}_end:")
    P("s_endpgm")
    return kd("p1_kernel", 256, 80, 256)


def p2(P):
    L = "p2"
    entry(P, "p2_kernel")
    XD_, WT_, V_ = 8, 12, 16
    sW, sT0, sT1, sK, sSC = 20, 21, 22, 23, 24
    vL, vN, vG4, vT, vO, vLA = 1, 2, 3, 4, 5, 6
    XF = 8
    CR, CI = 40, 56
    ER, EI = 72, 88
    T1C, T1S, T2C, T2S = 104, 112, 120, 128
    WR, WI, WD = 136, 144, 152
    DR, DI = 160, 168
    B2 = 176
    TMP = 184
    P("s_cmp_ge_u32 s2, 225")
    P(f"s_cbranch_scc1 {L}_end")
    P("s_load_dwordx2 s[4:5], s[0:1], 80")
    P(f"v_lshrrev_b32 {v(vT)}, 6, v0")
    P(f"v_and_b32 {v(vL)}, 63, v0")
    P(f"v_readfirstlane_b32 {s(sW)}, {v(vT)}")
    P(f"v_and_b32 {v(vN)}, 15, v0")
    P(f"v_lshrrev_b32 {v(vG4)}, 4, {v(vL)}")
    P(f"v_lshlrev_b32 {v(vO)}, 6, {v(vN)}")
    P(f"v_lshl_add_u32 {v(vO)}, {v(vG4)}, 4, {v(vO)}")
    P(f"s_cmp_eq_u32 s2, 224")
    P(f"s_cselect_b32 {s(sT0)}, 0, s2")
    P(f"s_lshl_b32 {s(sT0)}, {s(sT0)}, 13")
    P(f"s_add_u32 {s(sT1)}, {s(sT0)}, 4096")
    P(f"s_lshl_b32 {s(sK)}, s2, 13")
    P("s_waitcnt lgkmcnt(0)")
    srd(P, XD_, 4, 224 * 8192, WS_XD)
    for ks in range(4):
        for mt in range(2):
            off = ks * 2048 + mt * 1024
            so = sT0 if off < 4096 else sT1
            P(f"buffer_load_dwordx4 {v(XF + (mt * 4 + ks) * 4, 4)}, {v(vO)}, {s(XD_, 4)}, {s(so)} offen offset:{off % 4096}")
    srd(P, WT_, 4, 225 * 8192, WS_WT)
    srd(P, V_, 4, 225 * 8192, WS_V)
    P(f"s_lshl_b32 {s(sT0)}, {s(sW)}, 11")
    P(f"s_add_u32 {s(sK)}, {s(sK)}, {s(sT0)}")
    P(f"v_lshlrev_b32 {v(vLA)}, 4, {v(vL)}")
    for mt in range(2):
        P(f"buffer_load_dwordx4 {v(WD + 4 * mt, 4)}, {v(vLA)}, {s(WT_, 4)}, {s(sK)} offen offset:{mt * 1024}")
    fa, fb, fn, an = TMP, TMP + 1, TMP + 2, TMP + 4
    cs, sn = TMP + 8, TMP + 12
    P(f"s_lshl_b32 {s(sT0)}, {s(sW)}, 4")
    P(f"v_add_u32 {v(fa)}, {s(sT0)}, {v(vN)}")
    P(f"v_cvt_f32_u32 {v(fa)}, {v(fa)}")
    P(f"v_lshlrev_b32 {v(fb)}, 2, {v(vG4)}")
    P(f"v_cvt_f32_u32 {v(fb)}, {v(fb)}")
    P(f"v_cvt_f32_u32 {v(fn)}, {v(vN)}")

    def frag_pair(dr, di, rowf, scale, koff):
        P(f"v_mul_f32 {v(TMP + 3)}, {f32(scale)}, {v(rowf)}")
        for j in range(4):
            P(f"v_add_f32 {v(an + j)}, {f32(float(koff + j))}, {v(fb)}")
            P(f"v_mul_f32 {v(an + j)}, {v(an + j)}, {v(TMP + 3)}")
        for j in range(4):
            P(f"v_cos_f32 {v(cs + j)}, {v(an + j)}")
            P(f"v_sin_f32 {v(sn + j)}, {v(an + j)}")
        for j in range(4):
            P(f"v_cvt_pk_bf16_f32 {v(dr + j)}, {v(cs + j)}, {v(sn + j)}")
            P(f"v_cvt_pk_bf16_f32 {v(di + j)}, -{v(sn + j)}, {v(cs + j)}")

    for ks in range(4):
        frag_pair(CR + 4 * ks, CI + 4 * ks, fa, 1.0 / 64, 16 * ks)
    P(f"v_mul_f32 {v(TMP + 3)}, {f32(1.0 / 2048)}, {v(fa)}")
    for mt in range(2):
        for r in range(4):
            P(f"v_add_f32 {v(an + r)}, {f32(float(16 * mt + r))}, {v(fb)}")
            P(f"v_mul_f32 {v(an + r)}, {v(an + r)}, {v(TMP + 3)}")
        for r in range(4):
            P(f"v_cos_f32 {v(T1C + 4 * mt + r)}, {v(an + r)}")
            P(f"v_sin_f32 {v(T1S + 4 * mt + r)}, {v(an + r)}")
    for mt in range(2):
        if mt == 1:
            P(f"v_add_f32 {v(fn)}, {f32(16.0)}, {v(fn)}")
        for ks in range(2):
            frag_pair(ER + (mt * 2 + ks) * 4, EI + (mt * 2 + ks) * 4, fn, 1.0 / 32, 16 * ks)
        P(f"v_cvt_f32_u32 {v(cs)}, {s(sT0)}")
        P(f"v_add_f32 {v(cs)}, {v(cs)}, {v(fb)}")
        P(f"v_mul_f32 {v(TMP + 3)}, {f32(1.0 / 2048)}, {v(fn)}")
        for r in range(4):
            P(f"v_add_f32 {v(an + r)}, {f32(float(r))}, {v(cs)}")
            P(f"v_mul_f32 {v(an + r)}, {v(an + r)}, {v(TMP + 3)}")
        for r in range(4):
            P(f"v_cos_f32 {v(T2C + 4 * mt + r)}, {v(an + r)}")
            P(f"v_sin_f32 {v(T2S + 4 * mt + r)}, {v(an + r)}")
    P(f"s_mov_b32 {s(sSC)}, {f32(2.0 / (S_ * D_))}")
    P("s_waitcnt vmcnt(2)")
    P("s_cmp_eq_u32 s2, 0")
    P(f"s_cbranch_scc1 {L}_real")
    P("s_cmp_eq_u32 s2, 224")
    P(f"s_cbranch_scc0 {L}_go")
    P(f"{L}_real:")
    P(f"s_mov_b32 {s(sSC)}, {f32(1.0 / (S_ * D_))}")
    P("s_cmp_eq_u32 s2, 0")
    P(f"s_cselect_b32 {s(sT1)}, 0, 16")
    for i in range(32):
        P(f"v_bfe_u32 {v(XF + i)}, {v(XF + i)}, {s(sT1)}, 16")
    P(f"{L}_go:")
    for ks in range(4):
        for mt in range(2):
            for d, cm in ((DR, CR), (DI, CI)):
                c = "0" if ks == 0 else v(d + 4 * mt, 4)
                P(f"v_mfma_f32_16x16x32_bf16 {v(d + 4 * mt, 4)}, {v(XF + (mt * 4 + ks) * 4, 4)}, {v(cm + 4 * ks, 4)}, {c}")
    P("s_waitcnt vmcnt(0)")
    for i in range(8):
        P(f"v_lshlrev_b32 {v(WR + i)}, 16, {v(WD + i)}")
        P(f"v_and_b32 {v(WI + i)}, 0xffff0000, {v(WD + i)}")
        P(f"v_mul_f32 {v(WR + i)}, {s(sSC)}, {v(WR + i)}")
        P(f"v_mul_f32 {v(WI + i)}, {s(sSC)}, {v(WI + i)}")

    def cmul(cr, ci, sgn, swap):
        for i in range(0, 8, 2):
            a_, b_ = TMP + i, TMP + 8 + i
            P(f"v_pk_mul_f32 {v(a_, 2)}, {v(DR + i, 2)}, {v(cr + i, 2)}")
            P(f"v_pk_mul_f32 {v(b_, 2)}, {v(DI + i, 2)}, {v(cr + i, 2)}")
            ng = "neg_lo:[0,1,0] neg_hi:[0,1,0]"
            P(f"v_pk_fma_f32 {v(a_, 2)}, {v(DI + i, 2)}, {v(ci + i, 2)}, {v(a_, 2)} {ng if sgn > 0 else ''}")
            P(f"v_pk_fma_f32 {v(b_, 2)}, {v(DR + i, 2)}, {v(ci + i, 2)}, {v(b_, 2)} {ng if sgn < 0 else ''}")
        for i in range(8):
            a_, b_ = TMP + i, TMP + 8 + i
            if swap:
                a_, b_ = b_, a_
            P(f"v_cvt_pk_bf16_f32 {v(B2 + i)}, {v(a_)}, {v(b_)}")

    cmul(T1C, T1S, -1, False)
    for ks in range(2):
        for mt in range(2):
            for d, em in ((DR, ER), (DI, EI)):
                c = "0" if ks == 0 else v(d + 4 * mt, 4)
                P(f"v_mfma_f32_16x16x32_bf16 {v(d + 4 * mt, 4)}, {v(em + (mt * 2 + ks) * 4, 4)}, {v(B2 + 4 * ks, 4)}, {c}")
    cmul(WR, WI, +1, True)
    for ks in range(2):
        for nt in range(2):
            for d, em in ((DI, ER), (DR, EI)):
                c = "0" if ks == 0 else v(d + 4 * nt, 4)
                P(f"v_mfma_f32_16x16x32_bf16 {v(d + 4 * nt, 4)}, {v(B2 + 4 * ks, 4)}, {v(em + (nt * 2 + ks) * 4, 4)}, {c}")
    cmul(T2C, T2S, +1, True)
    P(f"s_lshl_b32 {s(sT0)}, {s(sW)}, 11")
    P(f"v_add_u32 {v(vT)}, {s(sT0)}, {v(vLA)}")
    P(f"ds_write_b128 {v(vT)}, {v(B2, 4)}")
    P(f"ds_write_b128 {v(vT)}, {v(B2 + 4, 4)} offset:1024")
    P("s_waitcnt lgkmcnt(0)")
    P("s_barrier")
    for ks in range(4):
        for nt in range(2):
            P(f"ds_read_b128 {v(XF + (ks * 2 + nt) * 4, 4)}, {v(vLA)} offset:{(ks * 2 + nt) * 1024}")
    for ks in range(4):
        P(f"s_waitcnt lgkmcnt({6 - 2 * ks})")
        for nt in range(2):
            for d, cm in ((DI, CR), (DR, CI)):
                c = "0" if ks == 0 else v(d + 4 * nt, 4)
                P(f"v_mfma_f32_16x16x32_bf16 {v(d + 4 * nt, 4)}, {v(cm + 4 * ks, 4)}, {v(XF + (ks * 2 + nt) * 4, 4)}, {c}")
    for nt in range(2):
        for r in range(4):
            P(f"v_cvt_pk_bf16_f32 {v(B2 + 4 * nt + r)}, {v(DR + 4 * nt + r)}, {v(DI + 4 * nt + r)}")
        P(f"buffer_store_dwordx4 {v(B2 + 4 * nt, 4)}, {v(vO)}, {s(V_, 4)}, {s(sK)} offen offset:{nt * 1024}")
    P(f"{L}_end:")
    P("s_endpgm")
    return kd("p2_kernel", 200, 32, 200)


P3_LDS = 4 * 28672


def p3(P):
    L = "p3"
    entry(P, "p3_kernel")
    W2_, OUT_, ACT_, V_, G_ = 12, 16, 20, 24, 28
    sW, sRB, sCB, sT0, sT1, sAO, sAO2, sWO, sLB, sVO = 32, 33, 34, 35, 36, 37, 38, 39, 40, 41
    vL, vM, vH, vT, vLA, vWA, vTR, vVA, vG0, vG1 = 1, 2, 3, 4, 5, 6, 7, 8, 9, 10
    DEPTH = 14
    AF = 16
    WFR = 128
    TMP = 144
    VF = 160
    ACF, ACD, MF = 0, 64, 128

    def accf(dt, nt):
        return ACF + (dt * 2 + nt) * 16

    def accd(dt, nt):
        return ACD + (dt * 2 + nt) * 16

    P("s_cmp_ge_u32 s2, 224")
    P(f"s_cbranch_scc1 {L}_end")
    P("s_load_dwordx2 s[4:5], s[0:1], 48")
    P("s_load_dwordx2 s[6:7], s[0:1], 64")
    P("s_load_dwordx2 s[8:9], s[0:1], 80")
    P(f"v_lshrrev_b32 {v(vT)}, 6, v0")
    P(f"v_and_b32 {v(vL)}, 63, v0")
    P(f"v_readfirstlane_b32 {s(sW)}, {v(vT)}")
    P(f"v_and_b32 {v(vM)}, 31, v0")
    P(f"v_lshrrev_b32 {v(vH)}, 5, {v(vL)}")
    P(f"s_lshr_b32 {s(sT0)}, s2, 3")
    P(f"s_mul_i32 {s(sT1)}, {s(sT0)}, 37")
    P(f"s_lshr_b32 {s(sT1)}, {s(sT1)}, 8")
    P(f"s_mul_i32 {s(sCB)}, {s(sT1)}, 7")
    P(f"s_sub_u32 {s(sCB)}, {s(sT0)}, {s(sCB)}")
    P(f"s_and_b32 {s(sRB)}, s2, 7")
    P(f"s_lshl_b32 {s(sRB)}, {s(sRB)}, 2")
    P(f"s_add_u32 {s(sRB)}, {s(sRB)}, {s(sT1)}")
    P(f"s_mul_i32 {s(sAO)}, {s(sRB)}, 224")
    P(f"s_mul_i32 {s(sT0)}, {s(sW)}, 28")
    P(f"s_add_u32 {s(sAO)}, {s(sAO)}, {s(sT0)}")
    P(f"s_lshl_b32 {s(sAO)}, {s(sAO)}, 10")
    P(f"s_add_u32 {s(sAO2)}, {s(sAO)}, {112 * 1024}")
    P(f"v_lshlrev_b32 {v(vLA)}, 4, {v(vL)}")
    P(f"v_lshrrev_b32 {v(vT)}, 3, {v(vL)}")
    P(f"v_mul_u32_u24 {v(vWA)}, 896, {v(vT)}")
    P(f"v_lshrrev_b32 {v(vT)}, 2, {v(vL)}")
    P(f"v_and_b32 {v(vT)}, 4, {v(vT)}")
    P(f"v_xor_b32 {v(vT)}, {v(vT)}, {v(vL)}")
    P(f"v_and_b32 {v(vT)}, 7, {v(vT)}")
    P(f"v_lshl_add_u32 {v(vWA)}, {v(vT)}, 4, {v(vWA)}")
    P(f"s_mul_i32 {s(sWO)}, {s(sW)}, {448 * 896}")
    P(f"s_lshl_b32 {s(sT0)}, {s(sCB)}, 7")
    P(f"s_add_u32 {s(sWO)}, {s(sWO)}, {s(sT0)}")
    P(f"s_mul_i32 {s(sLB)}, {s(sW)}, 28672")
    P("s_waitcnt lgkmcnt(0)")
    srd(P, W2_, 4, F_ * D_ * 2)
    srd(P, ACT_, 8, 64 * 112 * 1024, WS_ACT)

    def issue(st):
        sl = st % DEPTH
        for half in range(2):
            P(f"s_add_u32 m0, {s(sLB)}, {sl * 2048 + half * 1024}")
            P(f"buffer_load_dwordx4 {v(vWA)}, {s(W2_, 4)}, {s(sWO)} offen lds")
            P(f"s_add_u32 {s(sWO)}, {s(sWO)}, {8 * 896}")
        P(f"buffer_load_dwordx4 {v(AF + sl * 8, 4)}, {v(vLA)}, {s(ACT_, 4)}, {s(sAO)} offen offset:{(st % 4) * 1024}")
        P(f"buffer_load_dwordx4 {v(AF + sl * 8 + 4, 4)}, {v(vLA)}, {s(ACT_, 4)}, {s(sAO2)} offen offset:{(st % 4) * 1024}")
        if st % 4 == 3:
            P(f"s_add_u32 {s(sAO)}, {s(sAO)}, 4096")
            P(f"s_add_u32 {s(sAO2)}, {s(sAO2)}, 4096")

    for st in range(DEPTH):
        issue(st)
    srd(P, V_, 8, 225 * 8192, WS_V)
    srd(P, G_, 8, S_ * 4, WS_G)
    srd(P, OUT_, 6, S_ * D_ * 2)
    P(f"v_bfe_u32 {v(vT)}, {v(vL)}, 2, 2")
    P(f"v_lshl_add_u32 {v(vTR)}, {v(vH)}, 3, {v(vT)}")
    P(f"v_lshlrev_b32 {v(vTR)}, 7, {v(vTR)}")
    P(f"v_and_b32 {v(TMP)}, 2, {v(vT)}")
    P(f"v_lshl_add_u32 {v(vTR)}, {v(TMP)}, 5, {v(vTR)}")
    P(f"v_and_b32 {v(TMP)}, 16, {v(vL)}")
    P(f"v_lshl_add_u32 {v(vTR)}, {v(TMP)}, 1, {v(vTR)}")
    P(f"v_and_b32 {v(TMP)}, 3, {v(vL)}")
    P(f"v_lshl_add_u32 {v(vTR)}, {v(TMP)}, 3, {v(vTR)}")
    P(f"v_add_u32 {v(vTR)}, {s(sLB)}, {v(vTR)}")
    P(f"v_xor_b32 {v(vTR + 4)}, 64, {v(vTR)}")
    vTR1 = vTR + 4
    df, kf, an, cs, sn = TMP, TMP + 1, TMP + 4, TMP + 8, TMP + 12
    P(f"s_lshl_b32 {s(sT0)}, {s(sCB)}, 6")
    P(f"v_add_u32 {v(df)}, {s(sT0)}, {v(vM)}")
    P(f"v_cvt_f32_u32 {v(df)}, {v(df)}")
    P(f"v_add_f32 {v(df + 2)}, {f32(32.0)}, {v(df)}")
    P(f"v_mul_f32 {v(df)}, {f32(1.0 / 448)}, {v(df)}")
    P(f"v_mul_f32 {v(df + 2)}, {f32(1.0 / 448)}, {v(df + 2)}")
    P(f"s_lshl_b32 {s(sT0)}, {s(sW)}, 3")
    P(f"v_lshl_add_u32 {v(kf)}, {v(vH)}, 2, {s(sT0)}")
    P(f"v_lshlrev_b32 {v(vVA)}, 13, {v(kf)}")
    P(f"v_lshl_add_u32 {v(vVA)}, {v(vM)}, 2, {v(vVA)}")
    P(f"v_cvt_f32_u32 {v(kf)}, {v(kf)}")
    P(f"s_lshl_b32 {s(sVO)}, {s(sRB)}, 8")
    for i in range(8):
        for dt in range(2):
            for j in range(4):
                P(f"v_add_f32 {v(an + j)}, {f32(float(32 * i + j))}, {v(kf)}")
                P(f"v_mul_f32 {v(an + j)}, {v(an + j)}, {v(df + 2 * dt)}")
            for j in range(4):
                P(f"v_cos_f32 {v(cs + j)}, {v(an + j)}")
                P(f"v_sin_f32 {v(sn + j)}, {v(an + j)}")
            for j in range(4):
                P(f"v_cvt_pk_bf16_f32 {v(cs + j)}, {v(cs + j)}, -{v(sn + j)}")
            for j in range(4):
                P(f"v_accvgpr_write_b32 {a(MF + (i * 2 + dt) * 4 + j)}, {v(cs + j)}")

    def trd(st):
        sl = st % DEPTH
        b = WFR + (st & 1) * 8
        for dt, ad in ((0, vTR), (1, vTR1)):
            P(f"ds_read_b64_tr_b16 {v(b + 4 * dt, 2)}, {v(ad)} offset:{sl * 2048}")
            P(f"ds_read_b64_tr_b16 {v(b + 4 * dt + 2, 2)}, {v(ad)} offset:{sl * 2048 + 512}")

    def vload(i):
        for j in range(4):
            P(f"s_add_u32 {s(sT0)}, {s(sVO)}, {(32 * i + j) * 8192}")
            for nt in range(2):
                P(f"buffer_load_dword {v(VF + (i * 2 + nt) * 4 + j)}, {v(vVA)}, {s(V_, 4)}, {s(sT0)} offen offset:{nt * 128}")

    NST = 28
    issued = [("st", st) for st in range(DEPTH) for _ in range(4)]

    def wait_for(tag):
        last = max(i for i, t in enumerate(issued) if t == tag)
        return len(issued) - 1 - last

    P(f"s_waitcnt vmcnt({wait_for(('st', 0))})")
    trd(0)
    for st in range(NST):
        if st + 1 < NST:
            P(f"s_waitcnt vmcnt({min(63, wait_for(('st', st + 1)))})")
            trd(st + 1)
            P("s_waitcnt lgkmcnt(4)")
        else:
            P("s_waitcnt lgkmcnt(0)")
        sl = st % DEPTH
        b = WFR + (st & 1) * 8
        for dt in range(2):
            for nt in range(2):
                c = "0" if st == 0 else a(accf(dt, nt), 16)
                P(f"v_mfma_f32_32x32x16_bf16 {a(accf(dt, nt), 16)}, {v(b + 4 * dt, 4)}, {v(AF + sl * 8 + 4 * nt, 4)}, {c}")
        if st + DEPTH < NST:
            issue(st + DEPTH)
            issued += [("st", st + DEPTH)] * 4
        elif st - DEPTH < 8:
            i = st - DEPTH
            vload(i)
            issued += [("v", i)] * 8
        elif st - DEPTH == 8:
            P(f"v_lshlrev_b32 {v(vT)}, 2, {v(vM)}")
            P(f"buffer_load_dword {v(vG0)}, {v(vT)}, {s(G_, 4)}, {s(sVO)} offen")
            P(f"buffer_load_dword {v(vG1)}, {v(vT)}, {s(G_, 4)}, {s(sVO)} offen offset:128")
            issued += [("g", 0)] * 2
    for i in range(8):
        P(f"s_waitcnt vmcnt({wait_for(('v', i))})")
        for dt in range(2):
            for nt in range(2):
                c = "0" if i == 0 else a(accd(dt, nt), 16)
                P(f"v_mfma_f32_32x32x16_bf16 {a(accd(dt, nt), 16)}, {a(MF + (i * 2 + dt) * 4, 4)}, {v(VF + (i * 2 + nt) * 4, 4)}, {c}")
    P("s_waitcnt vmcnt(0)")
    og = TMP
    for nt, g in ((0, vG0), (1, vG1)):
        P(f"v_sub_f32 {v(og + nt)}, 1.0, {v(g)}")
        P(f"v_cvt_pk_bf16_f32 {v(og + nt)}, {v(og + nt)}, {v(og + nt)}")
        P(f"v_lshlrev_b32 {v(og + nt)}, 16, {v(og + nt)}")
        P(f"v_add_f32 {v(og + nt)}, {v(og + nt)}, {v(og + nt)}")
    R = AF
    for ti in range(4):
        nt = ti & 1
        for r in range(16):
            P(f"v_accvgpr_read_b32 {v(R + ti * 16 + r)}, {a(ACF + ti * 16 + r)}")
            P(f"v_accvgpr_read_b32 {v(R + 64 + r)}, {a(ACD + ti * 16 + r)}")
        for r in range(16):
            P(f"v_mul_f32 {v(R + ti * 16 + r)}, {v(R + ti * 16 + r)}, {v(og + nt)}")
            P(f"v_fmac_f32 {v(R + ti * 16 + r)}, {v(R + 64 + r)}, {v(vG0 + nt)}")
    P("s_barrier")
    P(f"s_lshl_b32 {s(sT0)}, {s(sW)}, 12")
    P(f"v_add_u32 {v(vT)}, {s(sT0)}, {v(vLA)}")
    for ti in range(4):
        for c in range(4):
            P(f"ds_write_b128 {v(vT)}, {v(R + ti * 16 + 4 * c, 4)} offset:{ti * 16384 + c * 1024}")
    P(f"s_lshl_b32 {s(sT0)}, {s(sW)}, 14")
    P(f"v_add_u32 {v(vT)}, {s(sT0)}, {v(vLA)}")
    P("s_waitcnt lgkmcnt(0)")
    P("s_barrier")
    for ww in range(4):
        for c in range(4):
            P(f"ds_read_b128 {v(R + ww * 16 + 4 * c, 4)}, {v(vT)} offset:{ww * 4096 + c * 1024}")
    P(f"s_and_b32 {s(sT0)}, {s(sW)}, 1")
    P(f"s_lshl_b32 {s(sT0)}, {s(sT0)}, 5")
    P(f"s_lshl_b32 {s(sT1)}, {s(sRB)}, 6")
    P(f"s_add_u32 {s(sT0)}, {s(sT0)}, {s(sT1)}")
    P(f"v_add_u32 {v(TMP)}, {s(sT0)}, {v(vM)}")
    P(f"v_bfe_u32 {v(TMP + 1)}, {v(TMP)}, 4, 5")
    P(f"v_and_b32 {v(TMP + 2)}, 15, {v(TMP)}")
    P(f"v_lshl_add_u32 {v(TMP + 1)}, {v(TMP + 2)}, 5, {v(TMP + 1)}")
    P(f"v_and_b32 {v(TMP + 2)}, 0x600, {v(TMP)}")
    P(f"v_add_u32 {v(TMP + 1)}, {v(TMP + 1)}, {v(TMP + 2)}")
    P(f"v_mul_u32_u24 {v(TMP + 1)}, 896, {v(TMP + 1)}")
    P(f"v_lshl_add_u32 {v(TMP + 1)}, {v(vH)}, 4, {v(TMP + 1)}")
    P(f"s_lshr_b32 {s(sT0)}, {s(sW)}, 1")
    P(f"s_lshl_b32 {s(sT0)}, {s(sT0)}, 6")
    P(f"s_lshl_b32 {s(sT1)}, {s(sCB)}, 7")
    P(f"s_add_u32 {s(sT0)}, {s(sT0)}, {s(sT1)}")
    P("s_waitcnt lgkmcnt(0)")
    for r in range(0, 16, 2):
        P(f"v_pk_add_f32 {v(R + r, 2)}, {v(R + r, 2)}, {v(R + 16 + r, 2)}")
        P(f"v_pk_add_f32 {v(R + 32 + r, 2)}, {v(R + 32 + r, 2)}, {v(R + 48 + r, 2)}")
        P(f"v_pk_add_f32 {v(R + r, 2)}, {v(R + r, 2)}, {v(R + 32 + r, 2)}")
    O = R + 64
    for i in range(8):
        P(f"v_cvt_pk_bf16_f32 {v(O + i)}, {v(R + 2 * i)}, {v(R + 2 * i + 1)}")
    for pr in range(2):
        o = O + 4 * pr
        P(f"v_permlane32_swap_b32 {v(o)}, {v(o + 2)}")
        P(f"v_permlane32_swap_b32 {v(o + 1)}, {v(o + 3)}")
        P(f"buffer_store_dwordx4 {v(o, 4)}, {v(TMP + 1)}, {s(OUT_, 4)}, {s(sT0)} offen offset:{pr * 32}")
    P(f"{L}_end:")
    P("s_endpgm")
    return kd("p3_kernel", 224 + 192, 48, 224)


def main():
    P = Prog()
    kds = [p1(P), p2(P), p3(P)]
    P.resolve()
    out = HEADER
    out += f"; @launch kernel=p1_kernel grid=(256,1,1) block=(256,1,1) lds={P1_LDS}\n"
    out += f"; @launch kernel=p2_kernel grid=(225,1,1) block=(256,1,1) lds=8192\n"
    out += f"; @launch kernel=p3_kernel grid=(224,1,1) block=(256,1,1) lds={P3_LDS}\n"
    out += '.amdgcn_target "amdgcn-amd-amdhsa--gfx950"\n.text\n'
    out += P.text()
    out += '.section .rodata,"a"\n'
    for k in kds:
        out += ".p2align 6\n" + k
    path = sys.argv[1] if len(sys.argv) > 1 else f"cdna_kernels/{NAME}.s"
    open(path, "w").write(out)


if __name__ == "__main__":
    main()
```

```python
import sys
from asmlib import Prog, v, a, s, f32

NAME = "gated_mix__spectral_gfnet__dense_activation_mish__prompt"
S_, D_, F_ = 2048, 448, 1792
WS_EP = 0
FS = 16
WS_F1 = 0x1000
WS_F3 = 0x5000
WS_F4 = 0x9000
WS_F2 = 0xD000
WS_G = 0x10000
WS_XD, WS_WT, WS_V, WS_ACT, WS_TS = 2 << 20, 4 << 20, 6 << 20, 8 << 20, 24 << 20
WS_END = 16 << 20
LOG2E = 1.4426950408889634
L_A, L_TAB, L_XR, L_EX = 0, 57344, 86016, 151552
LDS = 163840
STAMP = False
SPIN = 20000

HEADER = """; Kernarg layout for this problem (88 bytes, ptrs only, base s[0:1]):
"""

X_, W1_, B1_, W2_, OUT_, WS_, V_, WR_, WI_ = 28, 32, 36, 40, 44, 48, 52, 56, 60
sW, sJ7, sJM, sXCD, sRB, sQ, sSG, sTAG = 64, 65, 66, 67, 68, 69, 70, 71
sT0, sT1, sT2, sXO, sAO, sBO, sK, sCNT = 72, 73, 74, 75, 76, 77, 78, 79
sC0 = 88
sM = 90
sWO, sLW, sA0, sA1, sRB64, sSC = 82, 83, 84, 85, 86, 87
vL, vM, vH, vN, vG4, vT, vLA = 1, 2, 3, 4, 5, 6, 7
vXD = 8
vAD, vWD = 12, 13
vXR = 14
vTA, vTB, vTW = 18, 20, 22
vB = 24
TMP = 32
ACC, DACC, WF, TF = 64, 128, 144, 160
C64, E32, T1C, T1S, T2C, T2S = 176, 200, 224, 232, 240, 248


class Cnt:
    def __init__(self, mx):
        self.q, self.mx = [], mx

    def add(self, tag, n=1):
        self.q += [tag] * n

    def n(self, *tags):
        last = max(i for i, t in enumerate(self.q) if t in tags)
        return min(self.mx, len(self.q) - 1 - last)

    def clear(self):
        self.q = []


class Gen:
    def __init__(self):
        self.P = Prog()
        self.vm = Cnt(63)
        self.lg = Cnt(15)
        self.ns = 0
        self.nl = 0

    def __call__(self, t):
        self.P(t)

    def srd(self, d, b, nbytes, off=0):
        P = self.P
        if off:
            P(f"s_add_u32 {s(d)}, {s(b)}, {off}")
            P(f"s_addc_u32 {s(d+1)}, {s(b+1)}, 0")
        else:
            P(f"s_mov_b32 {s(d)}, {s(b)}")
            P(f"s_mov_b32 {s(d+1)}, {s(b+1)}")
        P(f"s_mov_b32 {s(d+2)}, {nbytes}")
        P(f"s_mov_b32 {s(d+3)}, 0x00020000")

    def stamp(self, i=None, real=False):
        if not STAMP:
            return
        if i is None:
            i = self.ns
        self.ns = max(self.ns, i + 1)
        assert i < 20
        self.P(f"{'s_memrealtime' if real else 's_memtime'} s[100:101]")
        self.P("s_waitcnt lgkmcnt(0)")
        self.P(f"v_writelane_b32 v31, s100, {i}")
        self.lg.clear()
        self.lg.add("z")

    def wvm(self, *tags):
        self.P(f"s_waitcnt vmcnt({self.vm.n(*tags)})")

    def wlg(self, *tags):
        if STAMP and not any(t in self.lg.q for t in tags):
            return
        self.P(f"s_waitcnt lgkmcnt({self.lg.n(*tags)})")

    def poll(self, vaddr, soff, vtmp, hook=None):
        P = self.P
        self.nl += 1
        L = f"poll{self.nl}"
        P(f"s_mov_b32 {s(sCNT)}, {SPIN}")
        if hook:
            P(f"buffer_load_dword {v(vtmp)}, {v(vaddr)}, {s(WS_, 4)}, {soff} offen sc1")
            P("s_waitcnt vmcnt(0)")
            hook()
            P(f"v_cmp_ne_u32 vcc, {s(sTAG)}, {v(vtmp)}")
            P(f"s_cbranch_vccz {L}_ok")
        P(f"{L}:")
        P(f"buffer_load_dword {v(vtmp)}, {v(vaddr)}, {s(WS_, 4)}, {soff} offen sc1")
        P("s_waitcnt vmcnt(0)")
        P(f"v_cmp_ne_u32 vcc, {s(sTAG)}, {v(vtmp)}")
        P(f"s_cbranch_vccz {L}_ok")
        P("s_sleep 2")
        P(f"s_sub_u32 {s(sCNT)}, {s(sCNT)}, 1")
        P(f"s_cbranch_scc0 {L}")
        P(f"{L}_ok:")
        self.vm.clear()
        self.vm.add("z", 2)

    def signal(self, soff):
        P = self.P
        P(f"v_mov_b32 {v(vB + 6)}, {s(sTAG)}")
        P(f"v_mov_b32 {v(vB + 5)}, 0")
        P("s_mov_b64 exec, 1")
        P(f"buffer_store_dword {v(vB + 6)}, {v(vB + 5)}, {s(WS_, 4)}, {soff} offen sc1")
        P("s_mov_b64 exec, -1")
        self.vm.add("flag")


def fma_const(dst, src, c, addend):
    if c == 0:
        return f"v_mov_b32 {v(dst)}, {v(addend)}"
    if c == 1:
        return f"v_add_f32 {v(dst)}, {v(src)}, {v(addend)}"
    return f"v_fmamk_f32 {v(dst)}, {v(src)}, {f32(float(c))}, {v(addend)}"


def p2_consts(t):
    o = []
    af, bs, fb, fn, lm = t, t + 1, t + 2, t + 3, t + 4
    cs, sn = t + 8, t + 12
    o.append(f"s_lshl_b32 {s(sT0)}, {s(sW)}, 4")
    o.append(f"v_add_u32 {v(af)}, {s(sT0)}, {v(vN)}")
    o.append(f"v_cvt_f32_u32 {v(af)}, {v(af)}")
    o.append(f"v_mul_f32 {v(af)}, {f32(1.0 / 64)}, {v(af)}")
    o.append(f"v_lshlrev_b32 {v(fb)}, 2, {v(vG4)}")
    o.append(f"v_cvt_f32_u32 {v(fb)}, {v(fb)}")
    o.append(f"v_cvt_f32_u32 {v(fn)}, {v(vN)}")
    o.append(f"v_mul_f32 {v(bs)}, {v(af)}, {v(fb)}")

    def six(dst, step, base, k0):
        for j in range(4):
            o.append(fma_const(sn + j, step, k0 + j, base))
        for j in range(4):
            o.append(f"v_cos_f32 {v(cs + j)}, {v(sn + j)}")
            o.append(f"v_sin_f32 {v(sn + j)}, {v(sn + j)}")
        for j in range(2):
            o.append(f"v_cvt_pk_bf16_f32 {v(dst + 2 + j)}, {v(cs + 2 * j)}, {v(cs + 2 * j + 1)}")
            o.append(f"v_cvt_pk_bf16_f32 {v(dst + 4 + j)}, {v(sn + 2 * j)}, {v(sn + 2 * j + 1)}")
        for j in range(2):
            o.append(f"v_xor_b32 {v(dst + j)}, 0x80008000, {v(dst + 4 + j)}")

    for ks in range(4):
        six(C64 + 6 * ks, af, bs, 16 * ks)
    o.append(f"v_mul_f32 {v(af)}, {f32(1.0 / 32)}, {v(af)}")
    o.append(f"v_mul_f32 {v(bs)}, {f32(1.0 / 32)}, {v(bs)}")
    for i in range(8):
        o.append(fma_const(T1S + i, af, 16 * (i >> 2) + (i & 3), bs))
    for i in range(8):
        o.append(f"v_cos_f32 {v(T1C + i)}, {v(T1S + i)}")
        o.append(f"v_sin_f32 {v(T1S + i)}, {v(T1S + i)}")
    o.append(f"v_mul_f32 {v(af)}, {f32(1.0 / 32)}, {v(fn)}")
    o.append(f"v_mul_f32 {v(bs)}, {v(af)}, {v(fb)}")
    six(E32, af, bs, 0)
    o.append(f"v_and_b32 {v(lm)}, 1, {v(vN)}")
    o.append(f"v_mul_u32_u24 {v(lm)}, 0x8000, {v(lm)}")
    o.append(f"v_lshl_or_b32 {v(lm)}, {v(lm)}, 16, {v(lm)}")
    for j in range(6):
        o.append(f"v_xor_b32 {v(E32 + 6 + j)}, {v(lm)}, {v(E32 + j)}")
    for j in range(12):
        o.append(f"v_xor_b32 {v(E32 + 12 + j)}, 0x80000000, {v(E32 + j)}")
    o.append(f"v_cvt_f32_u32 {v(lm)}, {s(sT0)}")
    o.append(f"v_add_f32 {v(fb)}, {v(lm)}, {v(fb)}")
    for nt in range(2):
        if nt:
            o.append(f"v_add_f32 {v(fn)}, {f32(16.0)}, {v(fn)}")
        o.append(f"v_mul_f32 {v(af)}, {f32(1.0 / 2048)}, {v(fn)}")
        o.append(f"v_mul_f32 {v(bs)}, {v(af)}, {v(fb)}")
        for r in range(4):
            o.append(fma_const(T2S + 4 * nt + r, af, r, bs))
    for i in range(8):
        o.append(f"v_cos_f32 {v(T2C + i)}, {v(T2S + i)}")
        o.append(f"v_sin_f32 {v(T2S + i)}, {v(T2S + i)}")
    return o


class Filler:
    def __init__(self, G):
        self.G, self.q = G, []

    def add(self, items):
        self.q += items

    def emit(self, n):
        while n > 0 and self.q:
            it = self.q.pop(0)
            if callable(it):
                it()
            else:
                self.G(it)
            n -= 1

    def drain(self):
        self.emit(1 << 30)


def w2reg(st):
    return 112 + 8 * st if st < 18 else 8 * (st - 18)


def build():
    G = Gen()
    P = G
    vm, lg = G.vm, G.lg
    K = NAME + "_kernel"
    G.P.raw(f".globl {K}")
    G.P.raw(".p2align 8")
    G.P.raw(f".type {K},@function")
    G.P.raw(f"{K}:")
    P("s_cmp_ge_u32 s2, 256")
    P("s_cbranch_scc1 L_end")
    if STAMP:
        P("v_mov_b32 v31, 0")
    G.stamp(0, True)
    G.stamp(1)
    P("s_load_dwordx16 s[4:19], s[0:1], 0")
    P("s_load_dwordx2 s[26:27], s[0:1], 64")
    P("s_load_dwordx2 s[24:25], s[0:1], 80")
    P(f"v_lshrrev_b32 {v(vT)}, 6, v0")
    P(f"v_and_b32 {v(vL)}, 63, v0")
    P(f"v_readfirstlane_b32 {s(sW)}, {v(vT)}")
    P(f"v_and_b32 {v(vM)}, 31, v0")
    P(f"v_lshrrev_b32 {v(vH)}, 5, {v(vL)}")
    P(f"v_and_b32 {v(vN)}, 15, v0")
    P(f"v_lshrrev_b32 {v(vG4)}, 4, {v(vL)}")
    P(f"v_lshlrev_b32 {v(vLA)}, 4, {v(vL)}")
    P(f"s_and_b32 {s(sXCD)}, s2, 7")
    P(f"s_lshr_b32 {s(sT0)}, s2, 3")
    P(f"s_mul_i32 {s(sJ7)}, {s(sT0)}, 37")
    P(f"s_lshr_b32 {s(sJ7)}, {s(sJ7)}, 8")
    P(f"s_mul_i32 {s(sJM)}, {s(sJ7)}, 7")
    P(f"s_sub_u32 {s(sJM)}, {s(sT0)}, {s(sJM)}")
    P(f"s_lshr_b32 {s(sRB)}, {s(sXCD)}, 1")
    P(f"s_lshl_b32 {s(sRB)}, {s(sRB)}, 2")
    P(f"s_add_u32 {s(sRB)}, {s(sRB)}, {s(sJ7)}")
    P(f"s_and_b32 {s(sQ)}, {s(sXCD)}, 1")
    P(f"s_mul_i32 {s(sQ)}, {s(sQ)}, 7")
    P(f"s_add_u32 {s(sQ)}, {s(sQ)}, {s(sJM)}")
    P(f"s_lshl_b32 {s(sSG)}, {s(sRB)}, 2")
    P(f"s_add_u32 {s(sSG)}, {s(sSG)}, {s(sW)}")
    P(f"s_and_b32 {s(sT0)}, {s(sSG)}, 1")
    P(f"s_lshl_b32 {s(sXO)}, {s(sT0)}, 3")
    P(f"s_and_b32 {s(sT0)}, {s(sSG)}, 8")
    P(f"s_lshl_b32 {s(sT0)}, {s(sT0)}, 1")
    P(f"s_add_u32 {s(sXO)}, {s(sXO)}, {s(sT0)}")
    P(f"s_and_b32 {s(sT0)}, {s(sSG)}, 6")
    P(f"s_lshl_b32 {s(sT0)}, {s(sT0)}, 6")
    P(f"s_add_u32 {s(sXO)}, {s(sXO)}, {s(sT0)}")
    P(f"s_and_b32 {s(sT0)}, {s(sSG)}, 48")
    P(f"s_lshl_b32 {s(sT0)}, {s(sT0)}, 5")
    P(f"s_add_u32 {s(sXO)}, {s(sXO)}, {s(sT0)}")
    P(f"s_mul_i32 {s(sXO)}, {s(sXO)}, 896")
    t0, t1, t2 = TMP, TMP + 1, TMP + 2
    P(f"v_lshrrev_b32 {v(t0)}, 3, {v(vL)}")
    P(f"v_and_b32 {v(t1)}, 4, {v(t0)}")
    P(f"v_xor_b32 {v(t1)}, {v(t1)}, {v(vL)}")
    P(f"v_and_b32 {v(t1)}, 7, {v(t1)}")
    P(f"v_mul_u32_u24 {v(t2)}, 896, {v(t0)}")
    P(f"v_lshl_add_u32 {v(vXD)}, {v(t1)}, 4, {v(t2)}")
    for r in range(1, 4):
        P(f"v_xor_b32 {v(vXD + r)}, {r * 16}, {v(vXD)}")
        P(f"v_add_u32 {v(vXD + r)}, {r * 28672}, {v(vXD + r)}")
    P(f"v_lshrrev_b32 {v(t1)}, 2, {v(vL)}")
    P(f"v_and_b32 {v(t1)}, 4, {v(t1)}")
    P(f"v_xor_b32 {v(t1)}, {v(t1)}, {v(vL)}")
    P(f"v_and_b32 {v(t1)}, 7, {v(t1)}")
    P(f"v_lshlrev_b32 {v(t1)}, 4, {v(t1)}")
    P(f"v_add_u32 {v(vWD)}, {v(t1)}, {v(t2)}")
    P(f"v_lshl_add_u32 {v(vAD)}, {v(t2)}, 2, {v(t1)}")
    P(f"s_lshl_b32 {s(sLW)}, {s(sW)}, 14")
    P(f"s_add_u32 {s(sLW)}, {s(sLW)}, {L_XR}")
    P(f"s_lshl_b32 {s(sAO)}, {s(sQ)}, 8")
    P(f"s_mul_i32 {s(sT0)}, {s(sW)}, 28672")
    P(f"s_add_u32 {s(sBO)}, {s(sAO)}, {s(sT0)}")
    P(f"s_add_u32 {s(sAO)}, {s(sBO)}, {s(sT0)}")
    P(f"s_add_u32 {s(sBO)}, {s(sBO)}, 128")
    P(f"s_lshl_b32 {s(sT2)}, {s(sW)}, 11")
    P("s_waitcnt lgkmcnt(0)")
    G.stamp(2)
    P(f"s_load_dword {s(sTAG)}, s[24:25], {WS_EP}")
    G.srd(X_, 4, S_ * D_ * 2)
    G.srd(WS_, 24, WS_END)
    P(f"s_cmp_ge_u32 {s(sJ7)}, 4")
    P("s_cbranch_scc1 L_side")
    G.srd(W1_, 12, D_ * F_ * 2)

    def issue_x(sb):
        for r in range(4):
            P(f"s_add_u32 m0, {s(sLW)}, {(sb & 3) * 4096 + r * 1024}")
            P(f"buffer_load_dwordx4 {v(vXD + r)}, {s(X_, 4)}, {s(sXO)} offen lds")
        P(f"s_add_u32 {s(sXO)}, {s(sXO)}, 128")
        vm.add(("x", sb), 4)

    def issue_a(sb):
        for i in range(2):
            P(f"s_add_u32 m0, {s(sT2)}, {L_A + sb * 8192 + i * 1024}")
            P(f"buffer_load_dwordx4 {v(vAD)}, {s(W1_, 4)}, {s(sAO)} offen lds")
            P(f"s_add_u32 {s(sAO)}, {s(sAO)}, {28672 if i == 0 else 7 * 28672}")
        vm.add(("a", sb), 2)

    def bpos(idx):
        return (((idx >> 2) + 3) & 3) * 4 + (idx & 3)

    def issue_b(idx):
        P(f"s_add_u32 m0, {s(sLW)}, {bpos(idx) * 1024}")
        P(f"buffer_load_dwordx4 {v(vAD)}, {s(W1_, 4)}, {s(sBO)} offen lds")
        P(f"s_add_u32 {s(sBO)}, {s(sBO)}, {4 * 28672}")
        vm.add(("b", idx))

    for sb in range(4):
        issue_x(sb)
        issue_a(sb)
    G.srd(B1_, 14, F_ * 2)
    P(f"v_lshlrev_b32 {v(vT)}, 1, {v(vL)}")
    P(f"s_lshl_b32 {s(sT0)}, {s(sQ)}, 8")
    BA = TMP + 16
    for i in range(2):
        P(f"buffer_load_ushort {v(BA + 4 * i)}, {v(vT)}, {s(B1_, 4)}, {s(sT0)} offen offset:{128 * i}")
    vm.add("bias", 2)
    for sb in range(4, 7):
        issue_a(sb)
    G.stamp(3)
    G.srd(W2_, 16, F_ * D_ * 2)
    G.srd(OUT_, 26, S_ * D_ * 2)
    G.srd(V_, 24, 225 * 8192, WS_V)
    P(f"v_bfe_u32 {v(t0)}, {v(vL)}, 2, 2")
    P(f"v_lshlrev_b32 {v(t1)}, 7, {v(t0)}")
    P(f"v_and_b32 {v(t2)}, 2, {v(t0)}")
    P(f"v_lshl_add_u32 {v(t1)}, {v(t2)}, 5, {v(t1)}")
    P(f"v_and_b32 {v(t2)}, 16, {v(vL)}")
    P(f"v_lshl_add_u32 {v(t1)}, {v(t2)}, 1, {v(t1)}")
    P(f"v_and_b32 {v(t2)}, 3, {v(vL)}")
    P(f"v_lshl_add_u32 {v(t1)}, {v(t2)}, 3, {v(t1)}")
    P(f"v_lshl_add_u32 {v(vTA)}, {v(vH)}, 10, {v(t1)}")
    P(f"v_xor_b32 {v(vTA + 1)}, 64, {v(vTA)}")
    P(f"v_lshl_add_u32 {v(vTB)}, {v(vH)}, 14, {v(t1)}")
    P(f"v_add_u32 {v(vTB)}, {L_XR}, {v(vTB)}")
    P(f"v_xor_b32 {v(vTB + 1)}, 64, {v(vTB)}")
    P(f"v_lshl_add_u32 {v(vTW)}, {v(vH)}, 9, {v(t1)}")
    P(f"s_and_b32 {s(sT0)}, {s(sW)}, 2")
    P(f"s_lshl_b32 {s(sT0)}, {s(sT0)}, 5")
    P(f"v_xor_b32 {v(vTW)}, {s(sT0)}, {v(vTW)}")
    P(f"v_xor_b32 {v(vTW + 1)}, 64, {v(vTW)}")
    P(f"v_and_b32 {v(t0)}, 3, {v(vL)}")
    P(f"v_bfe_u32 {v(t1)}, {v(vL)}, 2, 3")
    P(f"v_and_b32 {v(t2)}, 4, {v(t1)}")
    P(f"v_xor_b32 {v(t2)}, {v(t2)}, {v(t0)}")
    P(f"v_xor_b32 {v(t2)}, {v(t2)}, {v(vH)}")
    P(f"v_lshlrev_b32 {v(t2)}, 4, {v(t2)}")
    P(f"v_lshl_add_u32 {v(t2)}, {v(t1)}, 7, {v(t2)}")
    P(f"v_lshl_add_u32 {v(t2)}, {v(t0)}, 10, {v(t2)}")
    P(f"v_add_u32 {v(vXR)}, {s(sLW)}, {v(t2)}")
    for j in range(1, 4):
        P(f"v_xor_b32 {v(vXR + j)}, {32 * j}, {v(vXR)}")
    kf, ph, d0, ta = TMP, TMP + 1, TMP + 2, TMP + 3
    an = TMP + 4
    P(f"s_lshl_b32 {s(sT0)}, {s(sQ)}, 4")
    P(f"v_add_u32 {v(kf)}, {s(sT0)}, {v(vN)}")
    P(f"v_and_b32 {v(ph)}, 16, {v(vL)}")
    P(f"v_lshl_add_u32 {v(d0)}, {v(kf)}, 5, {v(ph)}")
    P(f"v_cmp_eq_u32 {s(sM, 2)}, 16, {v(d0)}")
    P(f"v_cvt_f32_u32 {v(kf)}, {v(kf)}")
    P(f"v_mul_f32 {v(kf)}, {f32(1.0 / 448)}, {v(kf)}")
    P(f"v_cvt_f32_u32 {v(ph)}, {v(ph)}")
    P(f"v_mul_f32 {v(ph)}, {f32(1.0 / 64)}, {v(ph)}")
    P(f"v_cndmask_b32 {v(kf)}, {v(kf)}, 0.5, {s(sM, 2)}")
    P(f"v_cndmask_b32 {v(ph)}, {v(ph)}, 0, {s(sM, 2)}")
    P(f"s_lshl_b32 {s(sT0)}, {s(sW)}, 4")
    P(f"v_lshl_add_u32 {v(d0)}, {v(vH)}, 3, {s(sT0)}")
    P(f"v_cvt_f32_u32 {v(d0)}, {v(d0)}")
    P(f"v_fma_f32 {v(ph)}, {v(d0)}, {v(kf)}, {v(ph)}")
    P(f"s_lshl_b32 {s(sT0)}, {s(sW)}, 10")
    P(f"s_add_u32 {s(sT0)}, {s(sT0)}, {L_TAB}")
    P(f"v_add_u32 {v(ta)}, {s(sT0)}, {v(vLA)}")
    for i in range(7):
        for j in range(8):
            P(fma_const(an + j, kf, 64 * i + j, ph))
        for j in range(8):
            P(f"v_cos_f32 {v(an + j)}, {v(an + j)}")
        o = TMP + 12 if i & 1 else TMP + 24
        for j in range(4):
            P(f"v_cvt_pk_bf16_f32 {v(o + j)}, {v(an + 2 * j)}, {v(an + 2 * j + 1)}")
        P(f"ds_write_b128 {v(ta)}, {v(o, 4)} offset:{i * 4096}")
    G.stamp(4)
    for ins in p2_consts(TMP):
        P(ins)
    BO = TMP + 24
    for i in range(2):
        for j in range(1, 4):
            P(f"v_mov_b32 {v(BA + 4 * i + j)}, 0")
            P(f"v_mov_b32 {v(BO + 4 * i + j)}, 0")
    P(f"v_mul_u32_u24 {v(BO + 4)}, 0x3f80, {v(vH)}")
    P(f"v_sub_u32 {v(BO)}, 0x3f80, {v(BO + 4)}")
    P("s_waitcnt lgkmcnt(0)")
    lg.clear()
    P(f"s_mul_i32 {s(sTAG)}, {s(sTAG)}, 1664525")
    P(f"s_add_u32 {s(sTAG)}, {s(sTAG)}, 1013904223")
    G.stamp(5)

    def rd_x(sb):
        for j in range(4):
            P(f"ds_read_b128 {a(16 * sb + 4 * j, 4)}, {v(vXR + j)} offset:{(sb & 3) * 4096}")
        lg.add(("x", sb), 4)

    def rd_a(t):
        b = WF + (t & 1) * 8
        for dt in range(2):
            P(f"ds_read_b64_tr_b16 {v(b + 4 * dt, 2)}, {v(vTA + dt)} offset:{L_A + t * 2048}")
            P(f"ds_read_b64_tr_b16 {v(b + 4 * dt + 2, 2)}, {v(vTA + dt)} offset:{L_A + t * 2048 + 512}")
        off = L_TAB + t * 1024
        P(f"ds_read_b128 {v(TF + (t & 1) * 4, 4)}, {v(vT)} offset:{off - 32768}")
        lg.add(("a", t), 5)

    def rd_b(t):
        b = WF + (t & 1) * 8
        off = (t & 1) * 32768 + bpos(t >> 1) * 1024
        for dt in range(2):
            P(f"ds_read_b64_tr_b16 {v(b + 4 * dt, 2)}, {v(vTB + dt)} offset:{off}")
            P(f"ds_read_b64_tr_b16 {v(b + 4 * dt + 2, 2)}, {v(vTB + dt)} offset:{off + 512}")
        lg.add(("b", t), 4)

    P(f"v_add_u32 {v(vT)}, 32768, {v(vLA)}")
    G.wvm(("x", 0), ("a", 0))
    P("s_barrier")
    rd_x(0)
    rd_a(0)
    G.stamp(6)
    nb = 0
    for t in range(28):
        sb = t >> 2
        if t == 0:
            pass
        if t + 1 < 28:
            if (t + 1) & 3 == 0:
                G.wvm(("x", sb + 1), ("a", sb + 1))
                P("s_barrier")
                rd_x(sb + 1)
            rd_a(t + 1)
        else:
            G.wvm(("b", 3))
            P("s_barrier")
            rd_b(0)
        G.wlg(("a", t))
        b = WF + (t & 1) * 8
        xf = a(4 * t, 4)
        for dt in range(2):
            c = "0" if t == 0 else v(ACC + 16 * dt, 16)
            P(f"v_mfma_f32_32x32x16_bf16 {v(ACC + 16 * dt, 16)}, {v(b + 4 * dt, 4)}, {xf}, {c}")
        c = "0" if t == 0 else v(DACC, 16)
        P(f"v_mfma_f32_32x32x16_bf16 {v(DACC, 16)}, {xf}, {v(TF + (t & 1) * 4, 4)}, {c}")
        if t & 3 == 0:
            if sb + 4 < 7:
                issue_x(sb + 4)
            elif sb >= 3:
                for _ in range(4):
                    if nb < 14:
                        issue_b(nb)
                        nb += 1
        if t == 18:
            G.wvm("bias")
            for ft in range(4):
                c = "0" if ft >= 2 else v(ACC + 16 * ft, 16)
                P(f"v_mfma_f32_32x32x16_bf16 {v(ACC + 16 * ft, 16)}, {v(BA + 4 * (ft >> 1), 4)}, {v(BO + 4 * (ft & 1), 4)}, {c}")
    G.stamp(7)

    FL = Filler(G)
    P(f"s_mov_b32 {s(sC0)}, {f32(-LOG2E)}")
    P(f"s_mov_b32 {s(sC0 + 1)}, {f32(-LOG2E)}")
    xs = []
    xa = vB
    xs.append(f"v_lshlrev_b32 {v(xa)}, 13, {v(vN)}")
    xs.append(f"v_lshl_add_u32 {v(xa)}, {v(vH)}, 4, {v(xa)}")
    xs.append(f"v_and_b32 {v(xa + 1)}, 16, {v(vL)}")
    xs.append(f"v_lshl_add_u32 {v(xa)}, {v(xa + 1)}, 1, {v(xa)}")
    xs.append(f"s_lshl_b32 {s(sT0)}, {s(sQ)}, 17")
    xs.append(f"s_lshl_b32 {s(sT1)}, {s(sSG)}, 7")
    xs.append(f"s_add_u32 {s(sT0)}, {s(sT0)}, {s(sT1)}")
    xs.append(f"s_add_u32 {s(sT0)}, {s(sT0)}, {WS_XD}")
    for i in range(8):
        xs.append(f"v_cvt_pk_bf16_f32 {v(DACC + i)}, {v(DACC + 2 * i)}, {v(DACC + 2 * i + 1)}")
    for pr in range(2):
        o = DACC + 4 * pr
        xs.append(f"v_permlane16_swap_b32 {v(o)}, {v(o + 2)}")
        xs.append(f"v_permlane16_swap_b32 {v(o + 1)}, {v(o + 3)}")

        def st(o=o, pr=pr):
            P(f"buffer_store_dwordx4 {v(o, 4)}, {v(xa)}, {s(WS_, 4)}, {s(sT0)} offen offset:{64 * pr} sc1")
            vm.add("xd")

        xs.append(st)
    xs.append(f"s_mul_i32 {s(sA0)}, {s(sSG)}, 112")
    xs.append(f"s_lshl_b32 {s(sT1)}, {s(sQ)}, 3")
    xs.append(f"s_add_u32 {s(sA0)}, {s(sA0)}, {s(sT1)}")
    xs.append(f"s_lshl_b32 {s(sA0)}, {s(sA0)}, 10")
    xs.append(f"s_add_u32 {s(sA0)}, {s(sA0)}, {WS_ACT}")
    xs.append(f"s_add_u32 {s(sA1)}, {s(sA0)}, 4096")

    def mish(fs):
        h = ACC + 8 * fs
        u = TMP + (fs & 1) * 16
        dn = u + 8
        o = []
        for i in range(4):
            o.append(f"v_pk_fma_f32 {v(u + 2 * i, 2)}, {v(h + 2 * i, 2)}, {s(sC0, 2)}, 1.0 op_sel_hi:[1,1,0]")
        for i in range(8):
            o.append(f"v_exp_f32 {v(u + i)}, {v(u + i)}")
        for i in range(4):
            o.append(f"v_pk_add_f32 {v(u + 2 * i, 2)}, {v(u + 2 * i, 2)}, 1.0 op_sel_hi:[1,0]")
        for i in range(4):
            o.append(f"v_pk_fma_f32 {v(dn + 2 * i, 2)}, {v(u + 2 * i, 2)}, {v(u + 2 * i, 2)}, 1.0 op_sel_hi:[1,1,0]")
        for i in range(8):
            o.append(f"v_rcp_f32 {v(dn + i)}, {v(dn + i)}")
        for i in range(4):
            o.append(f"v_pk_mul_f32 {v(u + 2 * i, 2)}, {v(u + 2 * i, 2)}, {v(dn + 2 * i, 2)} clamp")
        for i in range(4):
            o.append(f"v_pk_mul_f32 {v(u + 2 * i, 2)}, {v(u + 2 * i, 2)}, {v(h + 2 * i, 2)}")
        for i in range(4):
            o.append(f"v_cvt_pk_bf16_f32 {v(h + i)}, {v(u + 2 * i)}, {v(u + 2 * i + 1)}")

        def st():
            so = sA0 if fs < 4 else sA1
            P(f"buffer_store_dwordx4 {v(h, 4)}, {v(vLA)}, {s(WS_, 4)}, {s(so)} offen offset:{(fs & 3) * 1024} sc1")
            vm.add("act")

        o.append(st)
        return o

    sL1 = sXO
    P(f"s_mul_i32 {s(sL1)}, {s(sW)}, 21504")
    P(f"s_mul_i32 {s(sWO)}, {s(sW)}, {448 * 896}")
    P(f"s_lshl_b32 {s(sT0)}, {s(sJM)}, 7")
    P(f"s_add_u32 {s(sWO)}, {s(sWO)}, {s(sT0)}")

    def w2slot(st):
        if st < 10:
            return sL1, st * 2048
        if st < 18:
            return sLW, (st - 10) * 2048
        return sL1, (st - 18) * 2048

    def issue_w2(st, half):
        base, off = w2slot(st)
        P(f"s_add_u32 m0, {s(base)}, {off + half * 1024}")
        P(f"buffer_load_dwordx4 {v(vWD)}, {s(W2_, 4)}, {s(sWO)} offen lds")
        P(f"s_add_u32 {s(sWO)}, {s(sWO)}, {8 * 896}")
        vm.add(("w2", st))

    vW1, vW2 = vXD, vXD + 2

    def rd_w2(st):
        base, off = w2slot(st)
        ad = vW1 if base == sL1 else vW2
        for dt in range(2):
            P(f"ds_read_b64_tr_b16 {a(w2reg(st) + 4 * dt, 2)}, {v(ad + dt)} offset:{off}")
            P(f"ds_read_b64_tr_b16 {a(w2reg(st) + 4 * dt + 2, 2)}, {v(ad + dt)} offset:{off + 1024}")
        lg.add(("w2", st), 4)

    for dt in range(2):
        P(f"v_add_u32 {v(vW1 + dt)}, {s(sL1)}, {v(vTW + dt)}")
        P(f"v_add_u32 {v(vW2 + dt)}, {s(sLW)}, {v(vTW + dt)}")
    FL.add(xs)
    for fs in range(4):
        FL.add(mish(fs))
    nfill = len(FL.q)

    nw = 0
    for t in range(28):
        if t + 1 < 28:
            if (t + 1) in (8, 16, 24):
                G.wvm(("b", min(13, ((t + 1) >> 1) + 3)))
                P("s_barrier")
            rd_b(t + 1)
        G.wlg(("b", t))
        b = WF + (t & 1) * 8
        for dt in range(2):
            d = v(ACC + 32 + 16 * dt, 16)
            P(f"v_mfma_f32_32x32x16_bf16 {d}, {v(b + 4 * dt, 4)}, {a(4 * t, 4)}, {d}")
            FL.emit(4 if dt == 0 else 3)
        if t >= 8 and nw < 20:
            issue_w2(nw >> 1, nw & 1)
            nw += 1
        if t == 14:
            G.wvm("xd")
            P(f"s_lshl_b32 {s(sT0)}, {s(sQ)}, 6")
            P(f"s_add_u32 {s(sT0)}, {s(sT0)}, {s(sSG)}")
            P(f"s_mul_i32 {s(sT0)}, {s(sT0)}, {FS}")
            P(f"s_add_u32 {s(sT0)}, {s(sT0)}, {WS_F1}")
            G.signal(s(sT0))
    FL.drain()
    G.stamp(8)
    P("s_barrier")
    for fs in range(4, 8):
        FL.add(mish(fs))
    for i in range(16):
        FL.emit(10)
        issue_w2(10 + (i >> 1), i & 1)
    FL.drain()
    G.stamp(9)
    P(f"s_mov_b32 {s(sK)}, s2")

    P("L_p2:")
    XF, DR, DI, B2, WD, WR, WI, GG = 64, 96, 104, 112, 120, 128, 136, 144
    P(f"s_cmp_eq_u32 {s(sK)}, 224")
    P(f"s_cselect_b32 {s(sT2)}, 0, {s(sK)}")
    P(f"s_lshr_b32 {s(sT0)}, {s(sT2)}, 4")
    P(f"s_mul_i32 {s(sT0)}, {s(sT0)}, {64 * FS}")
    P(f"s_add_u32 {s(sT0)}, {s(sT0)}, {WS_F1}")
    P(f"v_mul_u32_u24 {v(vT)}, {FS}, {v(vL)}")
    P(f"s_lshl_b32 {s(sBO)}, {s(sSG)}, 4")
    P(f"s_add_u32 {s(sBO)}, {s(sBO)}, {s(sQ)}")
    P(f"s_mul_i32 {s(sBO)}, {s(sBO)}, {FS}")
    P(f"s_add_u32 {s(sBO)}, {s(sBO)}, {WS_F3}")

    def act_sig():
        P(f"s_cmp_ge_u32 {s(sJ7)}, 4")
        P("s_cbranch_scc1 L_nosig0")
        G.signal(s(sBO))
        P("L_nosig0:")

    G.poll(vT, s(sT0), TMP, hook=act_sig)
    G.stamp(10)
    P(f"s_lshl_b32 {s(sT2)}, {s(sT2)}, 13")
    P(f"s_add_u32 {s(sT2)}, {s(sT2)}, {WS_XD}")
    P(f"s_add_u32 {s(sT1)}, {s(sT2)}, 4096")
    for ks in range(4):
        for mt in range(2):
            off = ks * 2048 + mt * 1024
            so = sT2 if off < 4096 else sT1
            P(f"buffer_load_dwordx4 {v(XF + (mt * 4 + ks) * 4, 4)}, {v(vLA)}, {s(WS_, 4)}, {s(so)} offen offset:{off % 4096} sc1")
    P(f"s_cmp_ge_u32 {s(sJ7)}, 4")
    P("s_cbranch_scc1 L_nosig")
    for st in range(18):
        rd_w2(st)
    P("L_nosig:")
    P(f"v_mul_u32_u24 {v(vT)}, {FS}, {v(vM)}")
    P(f"s_mov_b32 {s(sT0)}, {WS_F2}")
    G.poll(vT, s(sT0), TMP)
    P(f"s_lshl_b32 {s(sT0)}, {s(sK)}, 13")
    P(f"s_lshl_b32 {s(sT1)}, {s(sW)}, 11")
    P(f"s_add_u32 {s(sT2)}, {s(sT0)}, {s(sT1)}")
    P(f"s_add_u32 {s(sT0)}, {s(sT2)}, {WS_WT}")
    P(f"s_add_u32 {s(sT1)}, {s(sT1)}, {WS_G}")
    for mt in range(2):
        P(f"buffer_load_dwordx4 {v(WD + 4 * mt, 4)}, {v(vLA)}, {s(WS_, 4)}, {s(sT0)} offen offset:{mt * 1024} sc1")
    for nt in range(2):
        P(f"buffer_load_dwordx4 {v(GG + 4 * nt, 4)}, {v(vLA)}, {s(WS_, 4)}, {s(sT1)} offen offset:{nt * 1024} sc1")
    vm.add("wd", 2)
    vm.add("gg", 2)
    G.stamp(11)
    P(f"s_mov_b32 {s(sSC)}, {f32(2.0 / (S_ * D_))}")
    P(f"s_cmp_eq_u32 {s(sK)}, 0")
    P("s_cbranch_scc1 L_real0")
    P(f"s_cmp_eq_u32 {s(sK)}, 224")
    P("s_cbranch_scc0 L_go")
    for i in range(8):
        P(f"v_mov_b64 {v(XF + 4 * i, 2)}, {v(XF + 4 * i + 2, 2)}")
    P("L_real0:")
    for i in range(8):
        P(f"v_mov_b64 {v(XF + 4 * i + 2, 2)}, 0")
    P(f"s_mov_b32 {s(sSC)}, {f32(1.0 / (S_ * D_))}")
    P("L_go:")

    def cr(base, i):
        return v(base + 6 * i + 2, 4)

    def ci(base, i):
        return v(base + 6 * i, 4)

    for ks in range(4):
        for mt in range(2):
            for d, cm in ((DR, cr), (DI, ci)):
                c = "0" if ks == 0 else v(d + 4 * mt, 4)
                P(f"v_mfma_f32_16x16x32_bf16 {v(d + 4 * mt, 4)}, {v(XF + (mt * 4 + ks) * 4, 4)}, {cm(C64, ks)}, {c}")
    P(f"s_cmp_ge_u32 {s(sJ7)}, 4")
    P("s_cbranch_scc1 L_nor3")
    P("s_waitcnt lgkmcnt(0)")
    P("s_waitcnt vmcnt(0)")
    for st in range(18, 28):
        for half in range(2):
            issue_w2(st, half)
    P("s_branch L_r3done")
    P("L_nor3:")
    P("s_waitcnt vmcnt(0)")
    P("L_r3done:")
    lg.clear()
    for i in range(8):
        P(f"v_lshlrev_b32 {v(WR + i)}, 16, {v(WD + i)}")
        P(f"v_and_b32 {v(WI + i)}, 0xffff0000, {v(WD + i)}")
        P(f"v_mul_f32 {v(WR + i)}, {s(sSC)}, {v(WR + i)}")
        P(f"v_mul_f32 {v(WI + i)}, {s(sSC)}, {v(WI + i)}")

    def cmul(c_r, c_i, sgn, swap):
        ng = "neg_lo:[0,1,0] neg_hi:[0,1,0]"
        for i in range(0, 8, 2):
            a_, b_ = TMP + i, TMP + 8 + i
            P(f"v_pk_mul_f32 {v(a_, 2)}, {v(DR + i, 2)}, {v(c_r + i, 2)}")
            P(f"v_pk_mul_f32 {v(b_, 2)}, {v(DI + i, 2)}, {v(c_r + i, 2)}")
            P(f"v_pk_fma_f32 {v(a_, 2)}, {v(DI + i, 2)}, {v(c_i + i, 2)}, {v(a_, 2)} {ng if sgn > 0 else ''}")
            P(f"v_pk_fma_f32 {v(b_, 2)}, {v(DR + i, 2)}, {v(c_i + i, 2)}, {v(b_, 2)} {ng if sgn < 0 else ''}")
        first, second = (TMP + 8, TMP) if swap else (TMP, TMP + 8)
        for mt in range(2):
            for j in range(2):
                P(f"v_cvt_pk_bf16_f32 {v(B2 + 4 * mt + j)}, {v(first + 4 * mt + 2 * j)}, {v(first + 4 * mt + 2 * j + 1)}")
                P(f"v_cvt_pk_bf16_f32 {v(B2 + 4 * mt + 2 + j)}, {v(second + 4 * mt + 2 * j)}, {v(second + 4 * mt + 2 * j + 1)}")

    cmul(T1C, T1S, -1, False)
    for ks in range(2):
        for mt in range(2):
            for d, em in ((DR, cr), (DI, ci)):
                c = "0" if ks == 0 else v(d + 4 * mt, 4)
                P(f"v_mfma_f32_16x16x32_bf16 {v(d + 4 * mt, 4)}, {em(E32, mt * 2 + ks)}, {v(B2 + 4 * ks, 4)}, {c}")
    cmul(WR, WI, +1, True)
    for ks in range(2):
        for nt in range(2):
            for d, em in ((DI, cr), (DR, ci)):
                c = "0" if ks == 0 else v(d + 4 * nt, 4)
                P(f"v_mfma_f32_16x16x32_bf16 {v(d + 4 * nt, 4)}, {v(B2 + 4 * ks, 4)}, {em(E32, nt * 2 + ks)}, {c}")
    cmul(T2C, T2S, +1, True)
    P(f"s_lshl_b32 {s(sT0)}, {s(sW)}, 11")
    P(f"v_add_u32 {v(TMP + 1)}, {L_EX}, {v(vLA)}")
    P(f"v_add_u32 {v(TMP)}, {s(sT0)}, {v(TMP + 1)}")
    P(f"ds_write_b128 {v(TMP)}, {v(B2, 4)}")
    P(f"ds_write_b128 {v(TMP)}, {v(B2 + 4, 4)} offset:1024")
    P("s_waitcnt lgkmcnt(0)")
    P("s_barrier")
    for ks in range(4):
        for nt in range(2):
            P(f"ds_read_b128 {v(XF + (ks * 2 + nt) * 4, 4)}, {v(TMP + 1)} offset:{(ks * 2 + nt) * 1024}")
    for ks in range(4):
        P(f"s_waitcnt lgkmcnt({6 - 2 * ks})")
        for nt in range(2):
            for d, cm in ((DI, cr), (DR, ci)):
                c = "0" if ks == 0 else v(d + 4 * nt, 4)
                P(f"v_mfma_f32_16x16x32_bf16 {v(d + 4 * nt, 4)}, {cm(C64, ks)}, {v(XF + (ks * 2 + nt) * 4, 4)}, {c}")
    P(f"s_add_u32 {s(sT2)}, {s(sT2)}, {WS_V}")
    for i in range(0, 8, 2):
        P(f"v_pk_mul_f32 {v(DR + i, 2)}, {v(DR + i, 2)}, {v(GG + i, 2)}")
        P(f"v_pk_mul_f32 {v(DI + i, 2)}, {v(DI + i, 2)}, {v(GG + i, 2)}")
    for nt in range(2):
        for r in range(4):
            P(f"v_cvt_pk_bf16_f32 {v(B2 + 4 * nt + r)}, {v(DR + 4 * nt + r)}, {v(DI + 4 * nt + r)}")
        P(f"buffer_store_dwordx4 {v(B2 + 4 * nt, 4)}, {v(vLA)}, {s(WS_, 4)}, {s(sT2)} offen offset:{nt * 1024} sc1")
    G.stamp(12)
    P(f"s_lshl_b32 {s(sBO)}, {s(sW)}, 8")
    P(f"s_add_u32 {s(sBO)}, {s(sBO)}, {s(sK)}")
    P(f"s_mul_i32 {s(sBO)}, {s(sBO)}, {FS}")
    P(f"s_add_u32 {s(sBO)}, {s(sBO)}, {WS_F4}")
    P(f"s_cmp_ge_u32 {s(sJ7)}, 4")
    P("s_cbranch_scc0 L_p3")
    P("s_waitcnt vmcnt(0)")
    G.signal(s(sBO))
    P("s_branch L_fin")

    P("L_p3:")
    AC3, AR, MF, VF = 64, 128, 192, 32
    DEPTH = 8
    P(f"s_lshl_b32 {s(sRB64)}, {s(sXCD)}, 2")
    P(f"s_add_u32 {s(sRB64)}, {s(sRB64)}, {s(sJ7)}")
    P(f"v_min_u32 {v(vT)}, 13, {v(vN)}")
    P(f"v_and_b32 {v(TMP)}, 16, {v(vL)}")
    P(f"v_add_u32 {v(vT)}, {v(vT)}, {v(TMP)}")
    P(f"v_mul_u32_u24 {v(vT)}, {FS}, {v(vT)}")
    P(f"s_mul_i32 {s(sT0)}, {s(sRB64)}, {32 * FS}")
    P(f"s_add_u32 {s(sT0)}, {s(sT0)}, {WS_F3}")
    G.poll(vT, s(sT0), TMP, hook=lambda: G.signal(s(sBO)))
    G.stamp(13)
    P(f"s_mul_i32 {s(sA0)}, {s(sRB64)}, 224")
    P(f"s_mul_i32 {s(sT0)}, {s(sW)}, 28")
    P(f"s_add_u32 {s(sA0)}, {s(sA0)}, {s(sT0)}")
    P(f"s_lshl_b32 {s(sA0)}, {s(sA0)}, 10")
    P(f"s_add_u32 {s(sA0)}, {s(sA0)}, {WS_ACT}")
    P(f"s_and_b32 {s(sT1)}, {s(sW)}, 1")
    P(f"s_mul_i32 {s(sT0)}, {s(sT1)}, {112 * 1024}")
    P(f"s_add_u32 {s(sA1)}, {s(sA0)}, {112 * 1024}")
    P(f"s_sub_u32 {s(sA1)}, {s(sA1)}, {s(sT0)}")
    P(f"s_add_u32 {s(sA0)}, {s(sA0)}, {s(sT0)}")

    def issue_act(st):
        sl = st % DEPTH
        for nt, so in ((0, sA0), (1, sA1)):
            P(f"buffer_load_dwordx4 {v(AR + sl * 8 + 4 * nt, 4)}, {v(vLA)}, {s(WS_, 4)}, {s(so)} offen offset:{(st % 4) * 1024} sc1")
        if st % 4 == 3:
            P(f"s_add_u32 {s(sA0)}, {s(sA0)}, 4096")
            P(f"s_add_u32 {s(sA1)}, {s(sA1)}, 4096")
        vm.add(("act", st), 2)

    for st in range(DEPTH):
        issue_act(st)
    g0 = vB
    P(f"s_lshl_b32 {s(sT1)}, {s(sT1)}, 7")
    P(f"v_lshl_add_u32 {v(vB + 2)}, {v(vM)}, 2, {s(sT1)}")
    P(f"v_xor_b32 {v(vB + 3)}, 128, {v(vB + 2)}")
    P(f"s_lshl_b32 {s(sT2)}, {s(sRB64)}, 8")
    P(f"s_add_u32 {s(sT0)}, {s(sT2)}, {WS_G}")
    for nt in range(2):
        P(f"buffer_load_dword {v(g0 + nt)}, {v(vB + 2 + nt)}, {s(WS_, 4)}, {s(sT0)} offen sc1")
    vm.add("g", 2)
    for st in range(18, 28):
        rd_w2(st)
    mg = []
    df, bs, cs, sn = TMP + 16, TMP + 18, TMP + 20, TMP + 24
    mg.append(f"s_lshl_b32 {s(sT0)}, {s(sJM)}, 6")
    mg.append(f"s_and_b32 {s(sT1)}, {s(sW)}, 2")
    mg.append(f"s_lshl_b32 {s(sT1)}, {s(sT1)}, 4")
    mg.append(f"s_add_u32 {s(sT0)}, {s(sT0)}, {s(sT1)}")
    mg.append(f"v_add_u32 {v(df)}, {s(sT0)}, {v(vM)}")
    mg.append(f"v_xor_b32 {v(df + 1)}, 32, {v(df)}")
    mg.append(f"s_mul_i32 {s(sT0)}, {s(sW)}, 56")
    mg.append(f"v_lshl_add_u32 {v(cs)}, {v(vH)}, 2, {s(sT0)}")
    mg.append(f"v_cvt_f32_u32 {v(cs)}, {v(cs)}")
    for dt in range(2):
        mg.append(f"v_cvt_f32_u32 {v(df + dt)}, {v(df + dt)}")
        mg.append(f"v_mul_f32 {v(df + dt)}, {f32(1.0 / 448)}, {v(df + dt)}")
        mg.append(f"v_mul_f32 {v(bs + dt)}, {v(df + dt)}, {v(cs)}")
    for i in range(8):
        for dt in range(2):
            for j in range(4):
                mg.append(fma_const(sn + j, df + dt, 8 * i + j, bs + dt))
            for j in range(4):
                mg.append(f"v_cos_f32 {v(cs + j)}, {v(sn + j)}")
                mg.append(f"v_sin_f32 {v(sn + j)}, {v(sn + j)}")
            for j in range(4):
                mg.append(f"v_cvt_pk_bf16_f32 {v(MF + (i * 2 + dt) * 4 + j)}, {v(cs + j)}, -{v(sn + j)}")
    FL.add(mg)
    P("s_waitcnt lgkmcnt(0)")
    lg.clear()
    for st in range(28):
        G.wvm(("act", st))
        sl = st % DEPTH
        for dt in range(2):
            for nt in range(2):
                d = v(AC3 + (dt * 2 + nt) * 16, 16)
                c = "0" if st == 0 else d
                P(f"v_mfma_f32_32x32x16_bf16 {d}, {a(w2reg(st) + 4 * dt, 4)}, {v(AR + sl * 8 + 4 * nt, 4)}, {c}")
                FL.emit(3)
        if st + DEPTH < 28:
            issue_act(st + DEPTH)
    FL.drain()
    G.stamp(14)
    P(f"s_mul_i32 {s(sT0)}, {s(sW)}, 56")
    P(f"v_add_u32 {v(vT)}, {s(sT0)}, {v(vL)}")
    P(f"v_min_u32 {v(vT)}, 224, {v(vT)}")
    P(f"v_mul_u32_u24 {v(vT)}, {FS}, {v(vT)}")
    P(f"s_lshr_b32 {s(sT1)}, {s(sRB64)}, 3")
    P(f"s_mul_i32 {s(sT1)}, {s(sT1)}, {256 * FS}")
    P(f"s_add_u32 {s(sT1)}, {s(sT1)}, {WS_F4}")
    G.poll(vT, s(sT1), TMP)
    G.stamp(15)
    P(f"v_lshlrev_b32 {v(vT)}, 13, {v(vG4)}")
    P(f"v_lshl_add_u32 {v(vT)}, {v(vN)}, 4, {v(vT)}")
    P(f"s_lshl_b32 {s(sT0)}, {s(sT0)}, 13")
    P(f"s_add_u32 {s(sT0)}, {s(sT0)}, {s(sT2)}")
    for i in range(16):
        P(f"s_add_u32 m0, {s(sLW)}, {i * 1024}")
        P(f"buffer_load_dwordx4 {v(vT)}, {s(V_, 4)}, {s(sT0)} offen sc1 lds")
        P(f"s_add_u32 {s(sT0)}, {s(sT0)}, {4 * 8192}")
        vm.add(("v", i >> 1))
    og = vB + 2
    for nt in range(2):
        P(f"v_sub_f32 {v(og + 2 * nt)}, 1.0, {v(g0 + nt)}")
        P(f"v_cvt_pk_bf16_f32 {v(og + 2 * nt)}, {v(og + 2 * nt)}, {v(og + 2 * nt)}")
        P(f"v_lshlrev_b32 {v(og + 2 * nt)}, 16, {v(og + 2 * nt)}")
        P(f"v_add_f32 {v(og + 2 * nt)}, {v(og + 2 * nt)}, {v(og + 2 * nt)}")
    for ti in range(4):
        for r in range(0, 16, 2):
            d = v(AC3 + ti * 16 + r, 2)
            P(f"v_pk_mul_f32 {d}, {d}, {v(og + 2 * (ti & 1), 2)} op_sel_hi:[1,0]")
    va = TMP + 16
    P(f"s_and_b32 {s(sT1)}, {s(sW)}, 1")
    P(f"s_lshl_b32 {s(sT1)}, {s(sT1)}, 7")
    P(f"s_add_u32 {s(sT1)}, {s(sT1)}, {s(sLW)}")
    P(f"v_lshl_add_u32 {v(va)}, {v(vM)}, 2, {s(sT1)}")
    P(f"v_lshl_add_u32 {v(va)}, {v(vH)}, 10, {v(va)}")
    P(f"v_xor_b32 {v(va + 1)}, 128, {v(va)}")

    def rd_v(i):
        b = VF + (i & 1) * 8
        for nt in range(2):
            for j in range(2):
                P(f"ds_read2st64_b32 {v(b + 4 * nt + 2 * j, 2)}, {v(va + nt)} offset0:{8 * i + 2 * j} offset1:{8 * i + 2 * j + 1}")
        lg.add(("v", i), 4)

    G.wvm(("v", 0))
    rd_v(0)
    for i in range(8):
        if i == 7:
            P(f"s_cmp_lt_u32 {s(sW)}, 3")
            P("s_cbranch_scc1 L_red")
        if i + 1 < 8:
            G.wvm(("v", i + 1))
            rd_v(i + 1)
        G.wlg(("v", i))
        b = VF + (i & 1) * 8
        for dt in range(2):
            for nt in range(2):
                d = v(AC3 + (dt * 2 + nt) * 16, 16)
                P(f"v_mfma_f32_32x32x16_bf16 {d}, {v(MF + (i * 2 + dt) * 4, 4)}, {v(b + 4 * nt, 4)}, {d}")
    P("L_red:")
    G.stamp(16)
    P("s_waitcnt lgkmcnt(0)")
    P("s_barrier")
    for tau in range(1, 4):
        P(f"s_xor_b32 {s(sT0)}, {s(sW)}, {tau}")
        P(f"s_mul_i32 {s(sT0)}, {s(sT0)}, 12288")
        P(f"v_add_u32 {v(TMP + tau)}, {s(sT0)}, {v(vLA)}")
        for c in range(4):
            P(f"ds_write_b128 {v(TMP + tau)}, {v(AC3 + tau * 16 + 4 * c, 4)} offset:{(tau - 1) * 4096 + c * 1024}")
    P(f"s_mul_i32 {s(sT0)}, {s(sW)}, 12288")
    P(f"v_add_u32 {v(TMP)}, {s(sT0)}, {v(vLA)}")
    oa = TMP + 4
    P(f"s_and_b32 {s(sT0)}, {s(sW)}, 1")
    P(f"s_lshl_b32 {s(sT0)}, {s(sT0)}, 5")
    P(f"s_lshl_b32 {s(sT1)}, {s(sRB64)}, 6")
    P(f"s_add_u32 {s(sT0)}, {s(sT0)}, {s(sT1)}")
    P(f"v_add_u32 {v(oa + 1)}, {s(sT0)}, {v(vM)}")
    P(f"v_bfe_u32 {v(oa)}, {v(oa + 1)}, 2, 4")
    P(f"v_bfe_u32 {v(oa + 2)}, {v(oa + 1)}, 8, 1")
    P(f"v_lshl_add_u32 {v(oa)}, {v(oa + 2)}, 4, {v(oa)}")
    P(f"v_and_b32 {v(oa + 2)}, 3, {v(oa + 1)}")
    P(f"v_lshl_add_u32 {v(oa)}, {v(oa + 2)}, 5, {v(oa)}")
    P(f"v_and_b32 {v(oa + 2)}, 0xc0, {v(oa + 1)}")
    P(f"v_lshl_add_u32 {v(oa)}, {v(oa + 2)}, 1, {v(oa)}")
    P(f"v_and_b32 {v(oa + 2)}, 0x600, {v(oa + 1)}")
    P(f"v_add_u32 {v(oa)}, {v(oa)}, {v(oa + 2)}")
    P(f"v_mul_u32_u24 {v(oa)}, 896, {v(oa)}")
    P(f"v_lshl_add_u32 {v(oa)}, {v(vH)}, 4, {v(oa)}")
    P(f"s_and_b32 {s(sT0)}, {s(sW)}, 2")
    P(f"s_lshl_b32 {s(sT0)}, {s(sT0)}, 5")
    P(f"s_lshl_b32 {s(sT1)}, {s(sJM)}, 7")
    P(f"s_add_u32 {s(sT0)}, {s(sT0)}, {s(sT1)}")
    P("s_waitcnt lgkmcnt(0)")
    P("s_barrier")
    for i in range(12):
        P(f"ds_read_b128 {v(AR + 4 * i, 4)}, {v(TMP)} offset:{i * 1024}")
    for tau in range(3):
        P(f"s_waitcnt lgkmcnt({8 - 4 * tau})")
        for r in range(0, 16, 2):
            P(f"v_pk_add_f32 {v(AC3 + r, 2)}, {v(AC3 + r, 2)}, {v(AR + 16 * tau + r, 2)}")
    O = AC3 + 16
    for i in range(8):
        P(f"v_cvt_pk_bf16_f32 {v(O + i)}, {v(AC3 + 2 * i)}, {v(AC3 + 2 * i + 1)}")
    for pr in range(2):
        o = O + 4 * pr
        P(f"v_permlane32_swap_b32 {v(o)}, {v(o + 2)}")
        P(f"v_permlane32_swap_b32 {v(o + 1)}, {v(o + 3)}")
        P(f"buffer_store_dwordx4 {v(o, 4)}, {v(oa)}, {s(OUT_, 4)}, {s(sT0)} offen offset:{pr * 32}")
    P(f"s_add_u32 {s(sT0)}, s2, {s(sW)}")
    P(f"s_cmp_eq_u32 {s(sT0)}, 0")
    P("s_cbranch_scc0 L_fin")
    P(f"s_mov_b32 {s(sT0)}, {WS_EP}")
    G.signal(s(sT0))
    P("s_branch L_fin")

    P("L_side:")
    sU = sRB
    G.srd(WR_, 6, S_ * 225 * 2)
    G.srd(WI_, 8, S_ * 225 * 2)
    G.srd(B1_, 18, D_ * 2)
    P(f"s_sub_u32 {s(sU)}, s2, 224")
    XG, GW = 64, 128
    oa = TMP + 4
    P(f"s_lshl_b32 {s(sT0)}, {s(sU)}, 6")
    P(f"s_lshl_b32 {s(sT1)}, {s(sW)}, 4")
    P(f"s_add_u32 {s(sT2)}, {s(sT0)}, {s(sT1)}")
    P(f"v_lshrrev_b32 {v(oa + 3)}, 2, {v(vL)}")
    P(f"v_add_u32 {v(oa + 1)}, {s(sT2)}, {v(oa + 3)}")
    P(f"v_bfe_u32 {v(oa)}, {v(oa + 1)}, 2, 4")
    P(f"v_bfe_u32 {v(oa + 2)}, {v(oa + 1)}, 8, 1")
    P(f"v_lshl_add_u32 {v(oa)}, {v(oa + 2)}, 4, {v(oa)}")
    P(f"v_and_b32 {v(oa + 2)}, 3, {v(oa + 1)}")
    P(f"v_lshl_add_u32 {v(oa)}, {v(oa + 2)}, 5, {v(oa)}")
    P(f"v_and_b32 {v(oa + 2)}, 0xc0, {v(oa + 1)}")
    P(f"v_lshl_add_u32 {v(oa)}, {v(oa + 2)}, 1, {v(oa)}")
    P(f"v_and_b32 {v(oa + 2)}, 0x600, {v(oa + 1)}")
    P(f"v_add_u32 {v(oa)}, {v(oa)}, {v(oa + 2)}")
    P(f"v_mul_u32_u24 {v(oa)}, 896, {v(oa)}")
    P(f"v_and_b32 {v(vT)}, 3, {v(vL)}")
    P(f"v_lshlrev_b32 {v(vT)}, 4, {v(vT)}")
    P(f"v_add_u32 {v(oa)}, {v(oa)}, {v(vT)}")
    P(f"s_and_b32 {s(sT0)}, {s(sU)}, 7")
    P(f"s_lshl_b32 {s(sT0)}, {s(sT0)}, 2")
    P(f"s_add_u32 {s(sT0)}, {s(sT0)}, {s(sW)}")
    P(f"s_lshl_b32 {s(sT0)}, {s(sT0)}, 2")
    P(f"s_lshr_b32 {s(sT1)}, {s(sU)}, 3")
    P(f"s_add_u32 {s(sT0)}, {s(sT0)}, {s(sT1)}")
    P(f"s_mul_i32 {s(sXO)}, {s(sT0)}, 7200")
    P(f"s_lshl_b32 {s(sT0)}, {s(sW)}, 13")
    for arr, sr in ((0, WR_), (1, WI_)):
        for half in range(2):
            P(f"s_add_u32 m0, {s(sT0)}, {arr * 32768 + half * 4096}")
            P(f"s_add_u32 {s(sT1)}, {s(sXO)}, {half * 4096}")
            for i in range(4):
                P(f"buffer_load_dwordx4 {v(vLA)}, {s(sr, 4)}, {s(sT1)} offen offset:{i * 1024} lds")
    for i in range(14):
        P(f"buffer_load_dwordx4 {v(XG + 4 * i, 4)}, {v(oa)}, {s(X_, 4)}, 0 offen offset:{i * 64}")
        P(f"buffer_load_dwordx4 {v(GW + 4 * i, 4)}, {v(vT)}, {s(B1_, 4)}, 0 offen offset:{i * 64}")
    P("s_waitcnt lgkmcnt(0)")
    P(f"s_mul_i32 {s(sTAG)}, {s(sTAG)}, 1664525")
    P(f"s_add_u32 {s(sTAG)}, {s(sTAG)}, 1013904223")
    la, ga_, o = TMP, TMP + 1, TMP + 8
    P(f"s_lshl_b32 {s(sT0)}, {s(sW)}, 2")
    P(f"v_add_u32 {v(TMP + 2)}, {s(sT0)}, {v(vG4)}")
    P(f"v_mul_u32_u24 {v(la)}, 450, {v(vN)}")
    P(f"v_lshl_add_u32 {v(la)}, {v(TMP + 2)}, 1, {v(la)}")
    P(f"v_lshlrev_b32 {v(ga_)}, 13, {v(TMP + 2)}")
    P(f"v_lshl_add_u32 {v(ga_)}, {v(vN)}, 4, {v(ga_)}")
    P(f"s_lshl_b32 {s(sT0)}, {s(sU)}, 8")
    P(f"s_add_u32 {s(sT0)}, {s(sT0)}, {WS_WT}")
    P(f"s_mov_b32 {s(sT1)}, 0")
    P("s_waitcnt vmcnt(28)")
    P("s_barrier")
    G.stamp(3)
    P("L_wt:")
    for i in range(3):
        for r in range(4):
            P(f"ds_read_u16 {v(o + 4 * i + r)}, {v(la)} offset:{r * 8192 + 32 * i}")
            P(f"ds_read_u16 {v(o + 12 + 4 * i + r)}, {v(la)} offset:{32768 + r * 8192 + 32 * i}")
    P(f"v_add_u32 {v(la)}, 96, {v(la)}")
    for i in range(3):
        P(f"s_waitcnt lgkmcnt({min(15, 16 - 8 * i)})")
        for r in range(4):
            P(f"v_lshl_or_b32 {v(o + 4 * i + r)}, {v(o + 12 + 4 * i + r)}, 16, {v(o + 4 * i + r)}")
        P(f"buffer_store_dwordx4 {v(o + 4 * i, 4)}, {v(ga_)}, {s(WS_, 4)}, {s(sT0)} offen sc1")
        P(f"s_add_u32 {s(sT0)}, {s(sT0)}, {16 * 8192}")
    P(f"s_add_u32 {s(sT1)}, {s(sT1)}, 1")
    P(f"s_cmp_lt_u32 {s(sT1)}, 5")
    P("s_cbranch_scc1 L_wt")
    G.stamp(4)
    P("s_waitcnt vmcnt(15)")
    z, xa2, ga2 = TMP, TMP + 8, TMP + 12
    P(f"s_mov_b32 {s(sT1)}, 0xffff0000")
    P(f"s_mov_b32 {s(sT0)}, 0x3f803f80")
    P(f"v_mov_b32 {v(z)}, 0")
    P(f"v_mov_b32 {v(z + 1)}, 0")
    for i in range(56):
        xx, gg = xa2 + 2 * (i & 1), ga2 + 2 * (i & 1)
        P(f"v_lshlrev_b32 {v(xx)}, 16, {v(XG + i)}")
        P(f"v_and_b32 {v(xx + 1)}, {s(sT1)}, {v(XG + i)}")
        P(f"v_lshlrev_b32 {v(gg)}, 16, {v(GW + i)}")
        P(f"v_and_b32 {v(gg + 1)}, {s(sT1)}, {v(GW + i)}")
        P(f"v_pk_mul_f32 {v(xx, 2)}, {v(xx, 2)}, {v(gg, 2)}")
        P(f"v_cvt_pk_bf16_f32 {v(gg)}, {v(xx)}, {v(xx + 1)}")
        P(f"v_lshlrev_b32 {v(xx)}, 16, {v(gg)}")
        P(f"v_and_b32 {v(xx + 1)}, {s(sT1)}, {v(gg)}")
        P(f"v_pk_add_f32 {v(z, 2)}, {v(z, 2)}, {v(xx, 2)}")
    P(f"v_add_f32 {v(z)}, {v(z)}, {v(z + 1)}")
    P(f"v_add_f32_dpp {v(z)}, {v(z)}, {v(z)} quad_perm:[1,0,3,2] row_mask:0xf bank_mask:0xf")
    P(f"v_add_f32_dpp {v(z)}, {v(z)}, {v(z)} quad_perm:[2,3,0,1] row_mask:0xf bank_mask:0xf")
    P(f"v_cvt_pk_bf16_f32 {v(z)}, {v(z)}, {v(z)}")
    P(f"v_lshlrev_b32 {v(z)}, 16, {v(z)}")
    P(f"v_mul_f32 {v(z)}, {f32(-LOG2E)}, {v(z)}")
    P(f"v_exp_f32 {v(z)}, {v(z)}")
    P(f"v_add_f32 {v(z)}, 1.0, {v(z)}")
    P(f"v_rcp_f32 {v(z)}, {v(z)}")
    P(f"v_cvt_pk_bf16_f32 {v(z)}, {v(z)}, {v(z)}")
    P(f"v_lshlrev_b32 {v(z)}, 16, {v(z)}")
    P(f"v_lshlrev_b32 {v(vT)}, 2, {v(oa + 1)}")
    P(f"s_mov_b32 {s(sT0)}, {WS_G}")
    P(f"buffer_store_dword {v(z)}, {v(vT)}, {s(WS_, 4)}, {s(sT0)} offen sc1")
    P("s_waitcnt vmcnt(0)")
    P("s_barrier")
    G.stamp(5)
    P(f"s_cmp_eq_u32 {s(sW)}, 0")
    P("s_cbranch_scc0 L_sig2")
    P(f"s_mul_i32 {s(sT0)}, {s(sU)}, {FS}")
    P(f"s_add_u32 {s(sT0)}, {s(sT0)}, {WS_F2}")
    G.signal(s(sT0))
    P("L_sig2:")
    P(f"s_cmp_eq_u32 {s(sU)}, 0")
    P("s_cbranch_scc0 L_fin")
    for ins in p2_consts(TMP):
        P(ins)
    P(f"s_mov_b32 {s(sK)}, 224")
    P("s_branch L_p2")

    P("L_fin:")
    if STAMP:
        P("s_waitcnt vmcnt(0)")
        G.stamp(17)
        G.stamp(18, True)
        G.srd(X_, 24, 1 << 20, WS_TS)
        P(f"s_lshl_b32 {s(sT0)}, s2, 2")
        P(f"s_add_u32 {s(sT0)}, {s(sT0)}, {s(sW)}")
        P(f"s_lshl_b32 {s(sT0)}, {s(sT0)}, 8")
        P(f"v_lshlrev_b32 v1, 2, v1")
        P(f"buffer_store_dword v31, v1, {s(X_, 4)}, {s(sT0)} offen")
    P("L_end:")
    P("s_endpgm")
    G.P.resolve()
    out = HEADER
    out += f"; @launch grid=(256,1,1) block=(256,1,1) lds={LDS}\n"
    out += '.amdgcn_target "amdgcn-amd-amdhsa--gfx950"\n.text\n'
    out += G.P.text()
    out += f""".section .rodata,"a"
.p2align 6
.amdhsa_kernel {K}
  .amdhsa_next_free_vgpr 512
  .amdhsa_next_free_sgpr 102
  .amdhsa_accum_offset 256
  .amdhsa_group_segment_fixed_size 0
  .amdhsa_kernarg_size 88
  .amdhsa_user_sgpr_count 2
  .amdhsa_user_sgpr_kernarg_segment_ptr 1
  .amdhsa_system_sgpr_workgroup_id_x 1
.end_amdhsa_kernel
"""
    return out


def main():
    global STAMP
    if "--stamp" in sys.argv:
        STAMP = True
        sys.argv.remove("--stamp")
    out = build()
    path = sys.argv[1] if len(sys.argv) > 1 else f"cdna_kernels/{NAME}.s"
    open(path, "w").write(out)


if __name__ == "__main__":
    main()
```

```python
import sys
from asmlib import Prog, v, a, s, f32

NAME = "gated_mix__spectral_gfnet__dense_activation_mish__prompt"
S_, D_, F_ = 2048, 448, 1792
WS_EP = 0
FS = 16
FW = 4
F4_AT = 7
WS_F1 = 0x20000
WS_F2 = 0x8000
WS_F4 = 0x40000
WS_F3 = 0x80000
WS_FX = 0x60000
WS_G = 0x10000
WS_XD, WS_WT, WS_V, WS_ACT, WS_TS = 2 << 20, 4 << 20, 6 << 20, 8 << 20, 24 << 20
WS_END = 16 << 20
LOG2E = 1.4426950408889634
L_TAB, L_XS, L_EX, L_SY = 131072, 131072, 139264, 159744
LDS = 163840
STAMP = False
AMP = None
SPIN = 20000
OPT = set()

HEADER = """; Kernarg layout for this problem (88 bytes, ptrs only, base s[0:1]):
"""

X_, W1_, B1_, W2_, OUT_, WS_, V_, WR_, WI_ = 28, 32, 36, 40, 44, 48, 52, 56, 60
sW, sJ7, sJM, sXCD, sRB, sQ, sSG, sTAG = 64, 65, 66, 67, 68, 69, 70, 71
sT0, sT1, sT2, sXO, sAO, sFL, sK, sCNT = 72, 73, 74, 75, 76, 77, 78, 79
sRG, sCH, sWO, sLW, sA0, sA1, sRB64, sSC = 80, 81, 82, 83, 84, 85, 86, 87
sC0 = 88
sM = 90
sLX, sLA, sBO, sI1, sI3 = 20, 21, 22, 23, 3
sFAST, sXC = 92, 93
vPA, vPR = 8, 9
vEP = 23
vSG = 26
L_XT = 131072
L_GT = 147456
PRE_CONST = 200
XFILL = 1
F1_AT = 1
DEPTH = 4
vL, vM, vH, vN, vG4, vT, vLA = 1, 2, 3, 4, 5, 6, 7
vXD = 8
vAD, vWD = 10, 11
vXR = 12
vTA = 16
vTW = 18
vTT = 22
vB = 24
TMP = 32
ACC, DACC = 64, 96
C64, E32, T1C, T1S, T2C, T2S = 112, 136, 160, 168, 176, 184
MF = 128


class Cnt:
    def __init__(self, mx):
        self.q = {"X": [], "Y": []}
        self.mx = mx

    def add(self, tag, n=1, g="XY"):
        for k in g:
            self.q[k] += [tag] * n

    def has(self, *tags):
        return any(t in tags for q in self.q.values() for t in q)

    def n(self, *tags, g="XY"):
        best = self.mx
        for k in g:
            q = self.q[k]
            idx = [i for i, t in enumerate(q) if t in tags]
            if idx:
                best = min(best, len(q) - 1 - idx[-1])
        return best

    def clear(self):
        self.q = {"X": [], "Y": []}


class Gen:
    def __init__(self):
        self.P = Prog()
        self.vm = Cnt(63)
        self.lg = Cnt(15)
        self.nl = 0

    def __call__(self, t):
        self.P(t)

    def srd(self, d, b, nbytes, off=0):
        P = self.P
        if off:
            P(f"s_add_u32 {s(d)}, {s(b)}, {off}")
            P(f"s_addc_u32 {s(d+1)}, {s(b+1)}, 0")
        else:
            P(f"s_mov_b32 {s(d)}, {s(b)}")
            P(f"s_mov_b32 {s(d+1)}, {s(b+1)}")
        P(f"s_mov_b32 {s(d+2)}, {nbytes}")
        P(f"s_mov_b32 {s(d+3)}, 0x00020000")

    def stamp(self, i, real=False):
        if AMP and i in AMP[:2]:
            self.P(f"s_memrealtime s[{94 + 2 * AMP.index(i)}:{95 + 2 * AMP.index(i)}]")
            self.P("s_waitcnt lgkmcnt(0)")
        if not STAMP:
            return
        self.P(f"{'s_memrealtime' if real else 's_memtime'} s[100:101]")
        self.P("s_waitcnt lgkmcnt(0)")
        self.P(f"v_writelane_b32 v31, s100, {i}")

    def wvm(self, *tags, g="XY"):
        assert self.vm.has(*tags), tags
        self.P(f"s_waitcnt vmcnt({self.vm.n(*tags, g=g)})")

    def wlg(self, *tags, g="XY"):
        assert self.lg.has(*tags), tags
        self.P(f"s_waitcnt lgkmcnt({self.lg.n(*tags, g=g)})")

    def label(self, base):
        self.nl += 1
        return f"{base}{self.nl}"

    def poll(self, vaddr, soff, vtmp, hook=None):
        P = self.P
        L = self.label("poll")
        P(f"s_mov_b32 {s(sCNT)}, {SPIN}")
        if hook:
            P(f"buffer_load_dword {v(vtmp)}, {v(vaddr)}, {s(WS_, 4)}, {soff} offen sc1")
            P("s_waitcnt vmcnt(0)")
            hook()
            P(f"v_cmp_ne_u32 vcc, {s(sTAG)}, {v(vtmp)}")
            P(f"s_cbranch_vccz {L}_ok")
        P(f"{L}:")
        P(f"buffer_load_dword {v(vtmp)}, {v(vaddr)}, {s(WS_, 4)}, {soff} offen sc1")
        P("s_waitcnt vmcnt(0)")
        P(f"v_cmp_ne_u32 vcc, {s(sTAG)}, {v(vtmp)}")
        P(f"s_cbranch_vccz {L}_ok")
        P(f"s_sleep {SLP}")
        P(f"s_sub_u32 {s(sCNT)}, {s(sCNT)}, 1")
        P(f"s_cbranch_scc0 {L}")
        P(f"{L}_ok:")
        self.vm.clear()

    def poll_issue(self):
        self.P(f"buffer_load_dword {v(vPR)}, {v(vPA)}, {s(WS_, 4)}, 0 offen {pf()}")
        self.vm.add("poll")

    def poll_check(self, slow=None):
        P = self.P
        L = self.label("poll")
        self.wvm("poll")
        P(f"v_cmp_ne_u32 vcc, {s(sTAG)}, {v(vPR)}")
        P(f"s_cbranch_vccz {L}_ok")
        save = {k: list(q) for k, q in self.vm.q.items()}
        if slow:
            P("s_waitcnt vmcnt(0)")
            slow()
        P(f"s_mov_b32 {s(sCNT)}, {SPIN}")
        P(f"{L}:")
        P(f"buffer_load_dword {v(vPR)}, {v(vPA)}, {s(WS_, 4)}, 0 offen {pf()}")
        P("s_waitcnt vmcnt(0)")
        P(f"v_cmp_ne_u32 vcc, {s(sTAG)}, {v(vPR)}")
        P(f"s_cbranch_vccz {L}_ok")
        P(f"s_sleep {SLP}")
        P(f"s_sub_u32 {s(sCNT)}, {s(sCNT)}, 1")
        P(f"s_cbranch_scc0 {L}")
        P(f"{L}_ok:")
        self.vm.q = save

    def signal(self, soff, g="XY", val=None):
        P = self.P
        if FW >= 64:
            for j in range(4):
                P(f"v_mov_b32 {v(vSG + j)}, {s(sTAG if val is None else val)}")
            P(f"s_mov_b64 exec, {hex((1 << (FW // 16)) - 1)}")
            P(f"buffer_store_dwordx4 {v(vSG, 4)}, {v(vLA)}, {s(WS_, 4)}, {soff} offen sc1")
        else:
            P(f"v_mov_b32 {v(vSG)}, {s(sTAG if val is None else val)}")
            P("s_mov_b64 exec, 1")
            P(f"buffer_store_dword {v(vSG)}, {v(vLA)}, {s(WS_, 4)}, {soff} offen sc1")
        P("s_mov_b64 exec, -1")
        self.vm.add("flag", 1, g)

    def swbar(self, word, count):
        self.arrive(word)
        self.check(word, count)

    def arrive(self, word):
        P = self.P
        P(f"v_mov_b32 {v(vB + 5)}, {L_SY + 4 * word}")
        P(f"v_mov_b32 {v(vB + 6)}, 1")
        P("s_mov_b64 exec, 1")
        P(f"ds_add_u32 {v(vB + 5)}, {v(vB + 6)}")
        P("s_mov_b64 exec, -1")

    def check(self, word, count):
        P = self.P
        L = self.label("swb")
        P(f"v_mov_b32 {v(vB + 5)}, {L_SY + 4 * word}")
        P(f"s_mov_b32 {s(sCNT)}, {SPIN * 64}")
        P(f"{L}:")
        P(f"ds_read_b32 {v(vB + 6)}, {v(vB + 5)}")
        P("s_waitcnt lgkmcnt(0)")
        P(f"v_cmp_gt_u32 vcc, {count}, {v(vB + 6)}")
        P(f"s_cbranch_vccz {L}_ok")
        P(f"s_sub_u32 {s(sCNT)}, {s(sCNT)}, 1")
        P(f"s_cbranch_scc0 {L}")
        P(f"{L}_ok:")
        self.lg.clear()


def stf(k):
    if k + "plain" in OPT:
        return ""
    if k + "sc01" in OPT:
        return "sc0 sc1"
    if k + "nt" in OPT:
        return "nt"
    return "sc1"


def pf():
    if "pnt" in OPT:
        return "sc1 nt"
    if "p01" in OPT:
        return "sc0 sc1"
    if "p01nt" in OPT:
        return "sc0 sc1 nt"
    return "sc1"


def fma_const(dst, src, c, addend):
    if c == 0:
        return f"v_mov_b32 {v(dst)}, {v(addend)}"
    if c == 1:
        return f"v_add_f32 {v(dst)}, {v(src)}, {v(addend)}"
    return f"v_fmamk_f32 {v(dst)}, {v(src)}, {f32(float(c))}, {v(addend)}"


def p2_consts(t):
    o = []
    af, bs, fb, fn, lm = t, t + 1, t + 2, t + 3, t + 4
    cs, sn = t + 8, t + 12
    o.append(f"s_lshl_b32 {s(sT0)}, {s(sRG)}, 4")
    o.append(f"v_add_u32 {v(af)}, {s(sT0)}, {v(vN)}")
    o.append(f"v_cvt_f32_u32 {v(af)}, {v(af)}")
    o.append(f"v_mul_f32 {v(af)}, {f32(1.0 / 64)}, {v(af)}")
    o.append(f"v_lshlrev_b32 {v(fb)}, 2, {v(vG4)}")
    o.append(f"v_cvt_f32_u32 {v(fb)}, {v(fb)}")
    o.append(f"v_cvt_f32_u32 {v(fn)}, {v(vN)}")
    o.append(f"v_mul_f32 {v(bs)}, {v(af)}, {v(fb)}")

    def six(dst, step, base, k0):
        for j in range(4):
            o.append(fma_const(sn + j, step, k0 + j, base))
        for j in range(4):
            o.append(f"v_cos_f32 {v(cs + j)}, {v(sn + j)}")
            o.append(f"v_sin_f32 {v(sn + j)}, {v(sn + j)}")
        for j in range(2):
            o.append(f"v_cvt_pk_bf16_f32 {v(dst + 2 + j)}, {v(cs + 2 * j)}, {v(cs + 2 * j + 1)}")
            o.append(f"v_cvt_pk_bf16_f32 {v(dst + 4 + j)}, {v(sn + 2 * j)}, {v(sn + 2 * j + 1)}")
        for j in range(2):
            o.append(f"v_xor_b32 {v(dst + j)}, 0x80008000, {v(dst + 4 + j)}")

    for ks in range(4):
        six(C64 + 6 * ks, af, bs, 16 * ks)
    o.append(f"v_mul_f32 {v(af)}, {f32(1.0 / 32)}, {v(af)}")
    o.append(f"v_mul_f32 {v(bs)}, {f32(1.0 / 32)}, {v(bs)}")
    for i in range(8):
        o.append(fma_const(T1S + i, af, 16 * (i >> 2) + (i & 3), bs))
    for i in range(8):
        o.append(f"v_cos_f32 {v(T1C + i)}, {v(T1S + i)}")
        o.append(f"v_sin_f32 {v(T1S + i)}, {v(T1S + i)}")
    o.append(f"v_mul_f32 {v(af)}, {f32(1.0 / 32)}, {v(fn)}")
    o.append(f"v_mul_f32 {v(bs)}, {v(af)}, {v(fb)}")
    six(E32, af, bs, 0)
    o.append(f"v_and_b32 {v(lm)}, 1, {v(vN)}")
    o.append(f"v_mul_u32_u24 {v(lm)}, 0x8000, {v(lm)}")
    o.append(f"v_lshl_or_b32 {v(lm)}, {v(lm)}, 16, {v(lm)}")
    for j in range(6):
        o.append(f"v_xor_b32 {v(E32 + 6 + j)}, {v(lm)}, {v(E32 + j)}")
    for j in range(12):
        o.append(f"v_xor_b32 {v(E32 + 12 + j)}, 0x80000000, {v(E32 + j)}")
    o.append(f"s_lshl_b32 {s(sT0)}, {s(sRG)}, 4")
    o.append(f"v_cvt_f32_u32 {v(lm)}, {s(sT0)}")
    o.append(f"v_add_f32 {v(fb)}, {v(lm)}, {v(fb)}")
    for nt in range(2):
        if nt:
            o.append(f"v_add_f32 {v(fn)}, {f32(16.0)}, {v(fn)}")
        o.append(f"v_mul_f32 {v(af)}, {f32(1.0 / 2048)}, {v(fn)}")
        o.append(f"v_mul_f32 {v(bs)}, {v(af)}, {v(fb)}")
        for r in range(4):
            o.append(fma_const(T2S + 4 * nt + r, af, r, bs))
    for i in range(8):
        o.append(f"v_cos_f32 {v(T2C + i)}, {v(T2S + i)}")
        o.append(f"v_sin_f32 {v(T2S + i)}, {v(T2S + i)}")
    return o


def m_frags(t):
    mg = []
    df, bs, cs, sn = t, t + 2, t + 4, t + 8
    mg.append(f"s_lshl_b32 {s(sT0)}, {s(sJM)}, 6")
    mg.append(f"v_add_u32 {v(df)}, {s(sT0)}, {v(vM)}")
    mg.append(f"v_add_u32 {v(df + 1)}, 32, {v(df)}")
    mg.append(f"s_mul_i32 {s(sT0)}, {s(sRG)}, 56")
    mg.append(f"v_lshl_add_u32 {v(cs)}, {v(vH)}, 2, {s(sT0)}")
    mg.append(f"v_cvt_f32_u32 {v(cs)}, {v(cs)}")
    for dt in range(2):
        mg.append(f"v_cvt_f32_u32 {v(df + dt)}, {v(df + dt)}")
        mg.append(f"v_mul_f32 {v(df + dt)}, {f32(1.0 / 448)}, {v(df + dt)}")
        mg.append(f"v_mul_f32 {v(bs + dt)}, {v(df + dt)}, {v(cs)}")
    for i in range(8):
        for dt in range(2):
            for j in range(4):
                mg.append(fma_const(sn + j, df + dt, 8 * i + j, bs + dt))
            for j in range(4):
                mg.append(f"v_cos_f32 {v(cs + j)}, {v(sn + j)}")
                mg.append(f"v_sin_f32 {v(sn + j)}, {v(sn + j)}")
            for j in range(4):
                mg.append(f"v_cvt_pk_bf16_f32 {v(MF + (i * 2 + dt) * 4 + j)}, {v(cs + j)}, -{v(sn + j)}")
    return mg


def row_of_p(P, dst, p, tmp):
    P(f"v_bfe_u32 {v(dst)}, {v(p)}, 2, 4")
    P(f"v_bfe_u32 {v(tmp)}, {v(p)}, 8, 1")
    P(f"v_lshl_add_u32 {v(dst)}, {v(tmp)}, 4, {v(dst)}")
    P(f"v_and_b32 {v(tmp)}, 3, {v(p)}")
    P(f"v_lshl_add_u32 {v(dst)}, {v(tmp)}, 5, {v(dst)}")
    P(f"v_and_b32 {v(tmp)}, 0xc0, {v(p)}")
    P(f"v_lshl_add_u32 {v(dst)}, {v(tmp)}, 1, {v(dst)}")
    P(f"v_and_b32 {v(tmp)}, 0x600, {v(p)}")
    P(f"v_add_u32 {v(dst)}, {v(dst)}, {v(tmp)}")
    P(f"v_mul_u32_u24 {v(dst)}, 896, {v(dst)}")


class Filler:
    def __init__(self, G):
        self.G, self.q = G, []

    def add(self, items):
        self.q += items

    def emit(self, n):
        while n > 0 and self.q:
            it = self.q.pop(0)
            if callable(it):
                it()
            else:
                self.G(it)
            n -= 1

    def drain(self):
        self.emit(1 << 30)


def xslot(n):
    return 0 if n == 6 else 32768 + 16384 * n


def wchunk(c):
    return 16384 + 8192 * c


LA = 3
LAG = 6
LATE = {4: [[3, 4], [5, 6]], 5: [[2, 3], [4, 5, 6]], 6: [[1, 2], [3, 4], [5, 6]], 7: [[0, 1], [2, 3, 4], [5, 6]]}
YPRIO = 1
XBAR = 0
W2P = 0
XDB = 3
WXA = 6
F1_N = 9
NY = 2
sLX2 = 92
F1_T = 16
XC1 = 150
YM1 = 120
YM2 = 200
NX = 3
ASIG = 1
VSIG = 1
VCHK = 9
XPK = 3
YEARLY = 2
YW2 = 8
SLP = 4
SGS = 128
TOUCH = 21


def build():
    G = Gen()
    P = G
    vm, lg = G.vm, G.lg
    K = NAME + "_kernel"
    G.P.raw(f".globl {K}")
    G.P.raw(".p2align 8")
    G.P.raw(f".type {K},@function")
    G.P.raw(f"{K}:")
    P("s_cmp_ge_u32 s2, 256")
    P("s_cbranch_scc1 L_end")
    if STAMP:
        P("v_mov_b32 v31, 0")
        G.stamp(0, True)
        G.stamp(1)
    P("s_load_dwordx16 s[4:19], s[0:1], 0")
    P("s_load_dwordx2 s[26:27], s[0:1], 64")
    P("s_load_dwordx2 s[24:25], s[0:1], 80")
    if "nocp" not in OPT:
        P("s_cmp_lt_u32 s2, 224")
        P("s_cbranch_scc1 L_nocp")
        P(f"s_getpc_b64 {s(WR_, 2)}")
        P("L_pc:")
        P(f"s_mov_b32 {s(WR_ + 2)}, L_end-L_pc")
        P(f"s_mov_b32 {s(WR_ + 3)}, 0x00020000")
        P(f"v_lshlrev_b32 {v(vT)}, 7, v0")
        P(f"buffer_load_dword {v(vEP)}, {v(vT)}, {s(WR_, 4)}, 0 offen")
        P("L_nocp:")
    P(f"v_lshrrev_b32 {v(vT)}, 6, v0")
    P(f"v_and_b32 {v(vL)}, 63, v0")
    P(f"v_readfirstlane_b32 {s(sW)}, {v(vT)}")
    P(f"v_and_b32 {v(vM)}, 31, v0")
    P(f"v_lshrrev_b32 {v(vH)}, 5, {v(vL)}")
    P(f"v_and_b32 {v(vN)}, 15, v0")
    P(f"v_lshrrev_b32 {v(vG4)}, 4, {v(vL)}")
    P(f"v_lshlrev_b32 {v(vLA)}, 4, {v(vL)}")
    P(f"s_and_b32 {s(sXCD)}, s2, 7")
    P(f"s_lshr_b32 {s(sT0)}, s2, 3")
    P(f"s_mul_i32 {s(sJ7)}, {s(sT0)}, 37")
    P(f"s_lshr_b32 {s(sJ7)}, {s(sJ7)}, 8")
    P(f"s_mul_i32 {s(sJM)}, {s(sJ7)}, 7")
    P(f"s_sub_u32 {s(sJM)}, {s(sT0)}, {s(sJM)}")
    P(f"s_lshl_b32 {s(sRB64)}, {s(sXCD)}, 2")
    P(f"s_add_u32 {s(sRB64)}, {s(sRB64)}, {s(sJ7)}")
    P(f"s_lshr_b32 {s(sRB)}, {s(sXCD)}, 1")
    P(f"s_lshl_b32 {s(sRB)}, {s(sRB)}, 2")
    P(f"s_add_u32 {s(sRB)}, {s(sRB)}, {s(sJ7)}")
    P(f"s_and_b32 {s(sQ)}, {s(sXCD)}, 1")
    P(f"s_mul_i32 {s(sQ)}, {s(sQ)}, 7")
    P(f"s_add_u32 {s(sQ)}, {s(sQ)}, {s(sJM)}")
    P(f"s_and_b32 {s(sRG)}, {s(sW)}, 3")
    P(f"s_lshr_b32 {s(sCH)}, {s(sW)}, 2")
    P(f"s_lshl_b32 {s(sSG)}, {s(sRB)}, 2")
    P(f"s_add_u32 {s(sSG)}, {s(sSG)}, {s(sRG)}")
    P(f"s_lshl_b32 {s(sLX)}, {s(sRG)}, 12")
    P(f"s_lshl_b32 {s(sLA)}, {s(sRG)}, 11")
    P(f"s_lshl_b32 {s(sLW)}, {s(sCH)}, 16")
    P(f"s_add_u32 {s(sLW)}, {s(sLW)}, {s(sLA)}")
    t0, t1, t2 = TMP, TMP + 1, TMP + 2
    XD4 = 104
    P(f"v_lshrrev_b32 {v(t0)}, 3, {v(vL)}")
    P(f"v_mul_u32_u24 {v(t2)}, 896, {v(t0)}")
    P(f"v_lshrrev_b32 {v(t1)}, 2, {v(vL)}")
    P(f"v_and_b32 {v(t1)}, 4, {v(t1)}")
    P(f"v_xor_b32 {v(t1)}, {v(t1)}, {v(vL)}")
    P(f"v_and_b32 {v(t1)}, 7, {v(t1)}")
    P(f"v_lshlrev_b32 {v(t1)}, 4, {v(t1)}")
    P(f"v_add_u32 {v(vWD)}, {v(t1)}, {v(t2)}")
    P(f"s_cmp_ge_u32 {s(sJ7)}, 4")
    P("s_cbranch_scc1 L_side")
    P(f"s_cmp_eq_u32 {s(sCH)}, 0")
    P("s_cbranch_scc1 L_x0")

    def stage(n):
        o = []

        def dx(n, r):
            P(f"s_add_u32 m0, {s(sLX)}, {xslot(n) + r * 1024}")
            P(f"buffer_load_dwordx4 {v(XD4 + r)}, {s(X_, 4)}, {s(sXO)} offen lds")
            if r == 3:
                P(f"s_add_u32 {s(sXO)}, {s(sXO)}, 128")
            vm.add(("st", n))

        def dw(n, base, so, i):
            P(f"s_add_u32 m0, {s(sLA)}, {base + i * 1024}")
            P(f"buffer_load_dwordx4 {v(vAD)}, {s(W1_, 4)}, {s(so)} offen lds")
            P(f"s_add_u32 {s(so)}, {s(so)}, {28672 if i == 0 else 7 * 28672}")
            vm.add(("st", n))

        if n < 7:
            o += [lambda r=r: dx(n, r) for r in range(4)]
        else:
            for c in (2 * (n - 7), 2 * (n - 7) + 1):
                o += [lambda i=i, c=c: dw(n, wchunk(c), sAO if c < 7 else sBO, i) for i in range(2)]
        return o

    NSTG = 14

    def run(items):
        for it in items:
            if callable(it):
                it()
            else:
                P(it)

    P(f"v_lshl_add_u32 {v(vAD)}, {v(t2)}, 2, {v(t1)}")
    P(f"v_and_b32 {v(t1)}, 4, {v(t0)}")
    P(f"v_xor_b32 {v(t1)}, {v(t1)}, {v(vL)}")
    P(f"v_and_b32 {v(t1)}, 7, {v(t1)}")
    P(f"v_lshl_add_u32 {v(XD4)}, {v(t1)}, 4, {v(t2)}")
    for r in range(1, 4):
        P(f"v_xor_b32 {v(XD4 + r)}, {r * 16}, {v(XD4)}")
        P(f"v_add_u32 {v(XD4 + r)}, {r * 28672}, {v(XD4 + r)}")
    P(f"s_and_b32 {s(sT0)}, {s(sSG)}, 1")
    P(f"s_lshl_b32 {s(sXO)}, {s(sT0)}, 3")
    P(f"s_and_b32 {s(sT0)}, {s(sSG)}, 8")
    P(f"s_lshl_b32 {s(sT0)}, {s(sT0)}, 1")
    P(f"s_add_u32 {s(sXO)}, {s(sXO)}, {s(sT0)}")
    P(f"s_and_b32 {s(sT0)}, {s(sSG)}, 6")
    P(f"s_lshl_b32 {s(sT0)}, {s(sT0)}, 6")
    P(f"s_add_u32 {s(sXO)}, {s(sXO)}, {s(sT0)}")
    P(f"s_and_b32 {s(sT0)}, {s(sSG)}, 48")
    P(f"s_lshl_b32 {s(sT0)}, {s(sT0)}, 5")
    P(f"s_add_u32 {s(sXO)}, {s(sXO)}, {s(sT0)}")
    P(f"s_mul_i32 {s(sXO)}, {s(sXO)}, 896")
    P(f"s_lshl_b32 {s(sAO)}, {s(sQ)}, 8")
    P(f"s_mul_i32 {s(sT0)}, {s(sRG)}, {2 * 28672}")
    P(f"s_add_u32 {s(sAO)}, {s(sAO)}, {s(sT0)}")
    P(f"s_add_u32 {s(sBO)}, {s(sAO)}, 128")
    P(f"s_mov_b32 {s(X_ + 2)}, {S_ * D_ * 2}")
    P(f"s_mov_b32 {s(X_ + 3)}, 0x00020000")
    P(f"s_mov_b32 {s(W1_ + 2)}, {D_ * F_ * 2}")
    P(f"s_mov_b32 {s(W1_ + 3)}, 0x00020000")
    P("s_waitcnt lgkmcnt(0)")
    G.stamp(2)
    P(f"s_mov_b64 {s(X_, 2)}, s[4:5]")
    P(f"s_mov_b64 {s(W1_, 2)}, s[12:13]")
    for n in range(LA):
        run(stage(n))
    P("s_branch L_y1")
    y_vm = {k: list(q) for k, q in vm.q.items()}

    def issue_w2(st, half, lw=sLW, wo=sWO, tag="w2"):
        P(f"s_add_u32 m0, {s(lw)}, {(st & 7) * 8192 + half * 1024}")
        P(f"buffer_load_dwordx4 {v(vWD)}, {s(W2_, 4)}, {s(wo)} offen lds")
        if half == 0 or st & 1 == 0:
            P(f"s_add_u32 {s(wo)}, {s(wo)}, {8 * 896}")
        else:
            P(f"s_add_u32 {s(wo)}, {s(wo)}, {s(sI1 if st & 3 == 1 else sI3)}")
        vm.add((tag, st))

    BA, BO = TMP + 16, TMP + 24

    def ptr_setup(bias):
        if bias:
            G.srd(B1_, 14, F_ * 2)
            P(f"v_lshlrev_b32 {v(vT)}, 1, {v(vL)}")
            P(f"s_lshl_b32 {s(sT0)}, {s(sQ)}, 8")
            for i in range(2):
                P(f"buffer_load_ushort {v(BA + 4 * i)}, {v(vT)}, {s(B1_, 4)}, {s(sT0)} offen offset:{128 * i}")
            vm.add("bias", 2)
        G.srd(WS_, 24, WS_END)
        P("s_mov_b64 exec, 1")
        P(f"buffer_load_dword {v(vEP)}, {v(vLA)}, {s(WS_, 4)}, 0 offen")
        P("s_mov_b64 exec, -1")
        vm.add("ep")
        G.srd(W2_, 16, F_ * D_ * 2)
        G.srd(OUT_, 26, S_ * D_ * 2)
        G.srd(V_, 24, 225 * 8192, WS_V)

    def w2_setup():
        o = []
        o.append(f"s_mul_i32 {s(sCNT)}, {s(sRG)}, 14")
        o.append(f"s_lshr_b32 {s(sT1)}, {s(sCNT)}, 2")
        o.append(f"s_lshl_b32 {s(sT1)}, {s(sT1)}, 7")
        o.append(f"s_and_b32 {s(sCNT)}, {s(sCNT)}, 3")
        o.append(f"s_lshl_b32 {s(sT2)}, {s(sCNT)}, 4")
        o.append(f"s_add_u32 {s(sT1)}, {s(sT1)}, {s(sT2)}")
        o.append(f"s_mul_i32 {s(sWO)}, {s(sT1)}, 896")
        o.append(f"s_lshl_b32 {s(sT1)}, {s(sJM)}, 7")
        o.append(f"s_add_u32 {s(sWO)}, {s(sWO)}, {s(sT1)}")
        o.append(f"s_mul_i32 {s(sI1)}, {s(sCNT)}, {32 * 896}")
        o.append(f"s_sub_u32 {s(sI3)}, {72 * 896}, {s(sI1)}")
        o.append(f"s_add_u32 {s(sI1)}, {s(sI1)}, {8 * 896}")
        return o

    def rd_setup():
        P(f"v_bfe_u32 {v(t0)}, {v(vL)}, 2, 2")
        P(f"v_lshlrev_b32 {v(t1)}, 7, {v(t0)}")
        P(f"v_and_b32 {v(t2)}, 2, {v(t0)}")
        P(f"v_lshl_add_u32 {v(t1)}, {v(t2)}, 5, {v(t1)}")
        P(f"v_and_b32 {v(t2)}, 16, {v(vL)}")
        P(f"v_lshl_add_u32 {v(t1)}, {v(t2)}, 1, {v(t1)}")
        P(f"v_and_b32 {v(t0)}, 3, {v(vL)}")
        P(f"v_lshl_add_u32 {v(t1)}, {v(t0)}, 3, {v(t1)}")
        P(f"v_lshl_add_u32 {v(vTA)}, {v(vH)}, 10, {v(t1)}")
        P(f"v_add_u32 {v(vTA)}, 16384, {v(vTA)}")
        P(f"v_xor_b32 {v(vTA + 1)}, 64, {v(vTA)}")
        P(f"v_lshl_add_u32 {v(vTW)}, {v(vH)}, 9, {v(t1)}")
        P(f"v_add_u32 {v(vTW)}, {s(sLW)}, {v(vTW)}")
        P(f"v_xor_b32 {v(vTW + 1)}, 64, {v(vTW)}")
        P(f"v_bfe_u32 {v(t1)}, {v(vL)}, 2, 3")
        P(f"v_and_b32 {v(t2)}, 4, {v(t1)}")
        P(f"v_xor_b32 {v(t2)}, {v(t2)}, {v(t0)}")
        P(f"v_xor_b32 {v(t2)}, {v(t2)}, {v(vH)}")
        P(f"v_lshlrev_b32 {v(t2)}, 4, {v(t2)}")
        P(f"v_lshl_add_u32 {v(t2)}, {v(t1)}, 7, {v(t2)}")
        P(f"v_lshl_add_u32 {v(t2)}, {v(t0)}, 10, {v(t2)}")
        P(f"v_add_u32 {v(vXR)}, {s(sLX)}, {v(t2)}")
        for j in range(1, 4):
            P(f"v_xor_b32 {v(vXR + j)}, {32 * j}, {v(vXR)}")

    def late_setup():
        o = []
        o.append(f"s_mov_b32 {s(sC0)}, {f32(-LOG2E)}")
        o.append(f"s_mov_b32 {s(sC0 + 1)}, {f32(-LOG2E)}")
        o.append(f"s_xor_b32 {s(sT2)}, {s(sCH)}, 1")
        o.append(f"s_mul_i32 {s(sA0)}, {s(sSG)}, {SGS}")
        o.append(f"s_mul_i32 {s(sT1)}, {s(sT2)}, 56")
        o.append(f"s_add_u32 {s(sA0)}, {s(sA0)}, {s(sT1)}")
        o.append(f"s_lshl_b32 {s(sT1)}, {s(sQ)}, 2")
        o.append(f"s_add_u32 {s(sA0)}, {s(sA0)}, {s(sT1)}")
        o.append(f"s_lshl_b32 {s(sA0)}, {s(sA0)}, 10")
        o.append(f"s_add_u32 {s(sA0)}, {s(sA0)}, {WS_ACT}")
        o.append(f"s_lshl_b32 {s(sFL)}, {s(sSG)}, 1")
        o.append(f"s_add_u32 {s(sFL)}, {s(sFL)}, {s(sT2)}")
        o.append(f"s_lshl_b32 {s(sFL)}, {s(sFL)}, 4")
        o.append(f"s_add_u32 {s(sFL)}, {s(sFL)}, {s(sQ)}")
        o.append(f"s_mul_i32 {s(sFL)}, {s(sFL)}, {FS}")
        o.append(f"s_add_u32 {s(sFL)}, {s(sFL)}, {WS_F3}")
        return o + w2_setup()

    def tag_ready():
        G.wvm("ep")
        P(f"v_readfirstlane_b32 {s(sTAG)}, {v(vEP)}")
        P(f"s_mul_i32 {s(sTAG)}, {s(sTAG)}, 1664525")
        P(f"s_add_u32 {s(sTAG)}, {s(sTAG)}, 1013904223")

    def xwin(n):
        if n == 2:
            for j in range(4):
                P(f"v_add_u32 {v(vXR + j)}, 0x10000, {v(vXR + j)}")
        if n == 6:
            for j in range(4):
                P(f"v_subrev_u32 {v(vXR + j)}, 0x10000, {v(vXR + j)}")

    def mish(fs, pk=True):
        h = ACC + 8 * fs
        u = TMP + (fs & 1) * 16
        dn = u + 8
        o = []
        if pk:
            o += [f"v_pk_fma_f32 {v(u + 2 * i, 2)}, {v(h + 2 * i, 2)}, {s(sC0, 2)}, 1.0 op_sel_hi:[1,1,0]" for i in range(4)]
            o += [f"v_exp_f32 {v(u + i)}, {v(u + i)}" for i in range(8)]
            o += [f"v_pk_add_f32 {v(u + 2 * i, 2)}, {v(u + 2 * i, 2)}, 1.0 op_sel_hi:[1,0]" for i in range(4)]
            o += [f"v_pk_fma_f32 {v(dn + 2 * i, 2)}, {v(u + 2 * i, 2)}, {v(u + 2 * i, 2)}, 1.0 op_sel_hi:[1,1,0]" for i in range(4)]
            o += [f"v_rcp_f32 {v(dn + i)}, {v(dn + i)}" for i in range(8)]
            o += [f"v_pk_mul_f32 {v(u + 2 * i, 2)}, {v(u + 2 * i, 2)}, {v(dn + 2 * i, 2)} clamp" for i in range(4)]
            o += [f"v_pk_mul_f32 {v(u + 2 * i, 2)}, {v(u + 2 * i, 2)}, {v(h + 2 * i, 2)}" for i in range(4)]
        else:
            o += [f"v_fma_f32 {v(u + i)}, {v(h + i)}, {s(sC0)}, 1.0" for i in range(8)]
            o += [f"v_exp_f32 {v(u + i)}, {v(u + i)}" for i in range(8)]
            o += [f"v_add_f32 {v(u + i)}, 1.0, {v(u + i)}" for i in range(8)]
            o += [f"v_fma_f32 {v(dn + i)}, {v(u + i)}, {v(u + i)}, 1.0" for i in range(8)]
            o += [f"v_rcp_f32 {v(dn + i)}, {v(dn + i)}" for i in range(8)]
            o += [f"v_mul_f32 {v(u + i)}, {v(u + i)}, {v(dn + i)} clamp" for i in range(8)]
            o += [f"v_mul_f32 {v(u + i)}, {v(u + i)}, {v(h + i)}" for i in range(8)]
        o += [f"v_cvt_pk_bf16_f32 {v(h + i)}, {v(u + 2 * i)}, {v(u + 2 * i + 1)}" for i in range(4)]

        def st():
            if "tinyact" in OPT:
                P("s_mov_b64 exec, 0xff")
            P(f"buffer_store_dwordx4 {v(h, 4)}, {v(vLA)}, {s(WS_, 4)}, {s(sA0)} offen offset:{fs * 1024} sc1")
            if "tinyact" in OPT:
                P("s_mov_b64 exec, -1")
            vm.add("act")

        o.append(st)
        return o

    def f3_addr():
        P(f"v_and_b32 {v(vPA)}, 3, {v(vL)}")
        P(f"v_and_b32 {v(vPR)}, 4, {v(vL)}")
        P(f"v_lshl_add_u32 {v(vPA)}, {v(vPR)}, 3, {v(vPA)}")
        P(f"s_mul_i32 {s(sT1)}, {s(sRG)}, 7")
        P(f"s_lshr_b32 {s(sT1)}, {s(sT1)}, 1")
        P(f"s_lshl_b32 {s(sT0)}, {s(sRB64)}, 6")
        P(f"s_add_u32 {s(sT0)}, {s(sT0)}, {s(sT1)}")
        P(f"s_lshl_b32 {s(sT1)}, {s(sCH)}, 4")
        P(f"s_add_u32 {s(sT0)}, {s(sT0)}, {s(sT1)}")
        P(f"s_add_u32 {s(sT0)}, {s(sT0)}, {WS_F3 // FS}")
        P(f"v_add_u32 {v(vPA)}, {s(sT0)}, {v(vPA)}")
        P(f"v_mul_u32_u24 {v(vPA)}, {FS}, {v(vPA)}")

    def f1_addr():
        P(f"s_cmp_eq_u32 {s(sK)}, 224")
        P(f"s_cselect_b32 {s(sT0)}, 0, {s(sK)}")
        P(f"s_lshr_b32 {s(sT0)}, {s(sT0)}, 4")
        P(f"s_lshl_b32 {s(sT0)}, {s(sT0)}, 2")
        P(f"s_add_u32 {s(sT0)}, {s(sT0)}, {s(sRG)}")
        P(f"s_lshl_b32 {s(sT0)}, {s(sT0)}, 4")
        P(f"s_add_u32 {s(sT0)}, {s(sT0)}, {WS_F1 // FS}")
        P(f"v_add_u32 {v(vPA)}, {s(sT0)}, {v(vN)}")
        P(f"v_add_u32 {v(vPR)}, {WS_F2 // FS}, {v(vM)}")
        P(f"v_cmp_eq_u32 vcc, 1, {v(vH)}")
        if "nof2" not in OPT:
            P(f"v_cndmask_b32 {v(vPA)}, {v(vPA)}, {v(vPR)}, vcc")
        P(f"v_mul_u32_u24 {v(vPA)}, {FS}, {v(vPA)}")

    AC3, AR, WF, VF = 64, 0, 32, 48
    NST = 14
    FL = Filler(G)

    def act_base():
        P(f"s_mul_i32 {s(sA0)}, {s(sRB64)}, {2 * SGS}")
        P(f"s_mul_i32 {s(sT1)}, {s(sRG)}, 14")
        P(f"s_add_u32 {s(sA0)}, {s(sA0)}, {s(sT1)}")
        P(f"s_mul_i32 {s(sT1)}, {s(sCH)}, 56")
        P(f"s_add_u32 {s(sA0)}, {s(sA0)}, {s(sT1)}")
        P(f"s_lshl_b32 {s(sA0)}, {s(sA0)}, 10")
        P(f"s_add_u32 {s(sA0)}, {s(sA0)}, {WS_ACT}")
        P(f"s_add_u32 {s(sA1)}, {s(sA0)}, {SGS * 1024}")

    def issue_act(st):
        sl = st % 4
        for nt, so in ((0, sA0), (1, sA1)):
            P(f"buffer_load_dwordx4 {a(AR + sl * 8 + 4 * nt, 4)}, {v(vLA)}, {s(WS_, 4)}, {s(so)} offen offset:{(st % 4) * 1024} sc1")
        if st % 4 == 3:
            P(f"s_add_u32 {s(sA0)}, {s(sA0)}, 4096")
            P(f"s_add_u32 {s(sA1)}, {s(sA1)}, 4096")
        vm.add(("act", st), 2)

    def w2r(st, o, n):
        return a(32 + 8 * (st - 2) + o, n) if 2 <= st < 6 else v(WF + (st & 1) * 8 + o, n)

    def rd_w2(st):
        off = (st & 7) * 8192
        for dt in range(2):
            P(f"ds_read_b64_tr_b16 {w2r(st, 4 * dt, 2)}, {v(vTW + dt)} offset:{off}")
            P(f"ds_read_b64_tr_b16 {w2r(st, 4 * dt + 2, 2)}, {v(vTW + dt)} offset:{off + 1024}")
        lg.add(("w2", st), 4)

    def w2_preload():
        for st in range(6):
            rd_w2(st)
        for st in range(6):
            G.wlg(("w2", st))
            issue_w2(st + 8, 0)
            issue_w2(st + 8, 1)
        lg.clear()

    def ffn_loop(after=None, nfill=5, lo=0, hi=NST):
        for st in range(lo, hi):
            if 6 <= st + 1 < NST:
                if st + 1 >= 8:
                    G.wvm(("w2", st + 1))
                rd_w2(st + 1)
            w = f" lgkmcnt({lg.n(('w2', st))})" if st >= 6 else ""
            P(f"s_waitcnt vmcnt({vm.n(('act', st))}){w}")
            if "ffnst" in OPT:
                G.stamp(33 + st)
            sl = st % 4
            for dt in range(2):
                for nt in range(2):
                    d = v(AC3 + (dt * 2 + nt) * 16, 16)
                    c = "0" if st == 0 else d
                    P(f"v_mfma_f32_32x32x16_bf16 {d}, {w2r(st, 4 * dt, 4)}, {a(AR + sl * 8 + 4 * nt, 4)}, {c}")
                    FL.emit(nfill)
            if st + DEPTH < NST:
                issue_act(st + DEPTH)
            if after:
                after(st)
        if hi == NST:
            FL.drain()

    def xreg(t):
        return a(4 * t, 4) if t < 16 else v(128 + 4 * (t - 16), 4)

    def rdx(n):
        xwin(n)
        for j in range(4):
            P(f"ds_read_b128 {xreg(4 * n + j)}, {v(vXR + j)} offset:{xslot(n) & 0xFFFF}")
            lg.add(("x", 4 * n + j))

    YW = 176
    ACA, DACC2 = 96, 64

    def w1_rd(t, dt):
        b = YW + (t & 1) * 8 + 4 * dt
        if t == 28 and dt == 0:
            for r in range(2):
                P(f"v_add_u32 {v(vTA + r)}, {28 * 2048}, {v(vTA + r)}")
        off = (t % 28) * 2048
        P(f"ds_read_b64_tr_b16 {v(b, 2)}, {v(vTA + dt)} offset:{off}")
        P(f"ds_read_b64_tr_b16 {v(b + 2, 2)}, {v(vTA + dt)} offset:{off + 512}")
        lg.add(("b", t, dt), 2)

    P("L_x0:")
    vm.clear()
    lg.clear()
    kf, ph, d0, ta, c2 = TMP, TMP + 1, TMP + 2, TMP + 3, TMP + 16
    an = TMP + 4
    P(f"v_mov_b32 {v(an)}, 0")
    P(f"v_lshlrev_b32 {v(ta)}, 2, {v(vL)}")
    P(f"v_add_u32 {v(ta)}, {L_SY}, {v(ta)}")
    P(f"ds_write_b32 {v(ta)}, {v(an)}")
    P(f"s_lshl_b32 {s(sT0)}, {s(sQ)}, 4")
    P(f"v_add_u32 {v(kf)}, {s(sT0)}, {v(vN)}")
    P(f"v_and_b32 {v(ph)}, 16, {v(vL)}")
    P(f"v_lshl_add_u32 {v(d0)}, {v(kf)}, 5, {v(ph)}")
    P(f"v_cmp_eq_u32 {s(sM, 2)}, 16, {v(d0)}")
    P(f"v_cvt_f32_u32 {v(kf)}, {v(kf)}")
    P(f"v_mul_f32 {v(kf)}, {f32(1.0 / 448)}, {v(kf)}")
    P(f"v_cvt_f32_u32 {v(ph)}, {v(ph)}")
    P(f"v_mul_f32 {v(ph)}, {f32(1.0 / 64)}, {v(ph)}")
    P(f"v_cndmask_b32 {v(kf)}, {v(kf)}, 0.5, {s(sM, 2)}")
    P(f"v_cndmask_b32 {v(ph)}, {v(ph)}, 0, {s(sM, 2)}")
    P(f"s_lshl_b32 {s(sT0)}, {s(sW)}, 4")
    P(f"v_lshl_add_u32 {v(d0)}, {v(vH)}, 3, {s(sT0)}")
    P(f"v_cvt_f32_u32 {v(d0)}, {v(d0)}")
    P(f"v_fma_f32 {v(ph)}, {v(d0)}, {v(kf)}, {v(ph)}")
    P(f"v_cos_f32 {v(c2)}, {v(kf)}")
    P(f"v_add_u32 {v(vTT)}, {L_TAB}, {v(vLA)}")
    P(f"s_lshl_b32 {s(sT0)}, {s(sW)}, 10")
    P(f"v_add_u32 {v(ta)}, {s(sT0)}, {v(vTT)}")
    P(f"v_add_f32 {v(c2)}, {v(c2)}, {v(c2)}")
    for i in range(7):
        for j in (3, 4):
            P(fma_const(an + j, kf, 64 * i + j, ph))
        for j in (3, 4):
            P(f"v_cos_f32 {v(an + j)}, {v(an + j)}")
        for j in range(3):
            P(f"v_fma_f32 {v(an + 5 + j)}, {v(c2)}, {v(an + 4 + j)}, -{v(an + 3 + j)}")
            P(f"v_fma_f32 {v(an + 2 - j)}, {v(c2)}, {v(an + 3 - j)}, -{v(an + 4 - j)}")
        o = TMP + 12 if i & 1 else DACC
        for j in range(4):
            P(f"v_cvt_pk_bf16_f32 {v(o + j)}, {v(an + 2 * j)}, {v(an + 2 * j + 1)}")
        P(f"ds_write_b128 {v(ta)}, {v(o, 4)} offset:{i * 4096}")
    rd_setup()
    P("s_waitcnt lgkmcnt(0)")
    G.stamp(2)
    ptr_setup(True)
    run(late_setup())
    xa = vB
    P(f"v_mul_u32_u24 {v(xa)}, 144, {v(vN)}")
    P(f"s_mul_i32 {s(sT2)}, {s(sRG)}, 2304")
    P(f"s_add_u32 {s(sT2)}, {s(sT2)}, {L_XT}")
    P(f"v_add_u32 {v(xa)}, {s(sT2)}, {v(xa)}")
    P(f"v_lshl_add_u32 {v(xa)}, {v(vH)}, 4, {v(xa)}")
    P(f"v_and_b32 {v(xa + 1)}, 16, {v(vL)}")
    P(f"v_lshl_add_u32 {v(xa)}, {v(xa + 1)}, 1, {v(xa)}")
    P(f"v_add_u32 {v(xa + 1)}, {s(sLA)}, {v(vLA)}")
    for i in range(2):
        for j in range(1, 4):
            P(f"v_mov_b32 {v(BA + 4 * i + j)}, 0")
            P(f"v_mov_b32 {v(BO + 4 * i + j)}, 0")
    P(f"v_mul_u32_u24 {v(BO + 4)}, 0x3f80, {v(vH)}")
    P(f"v_sub_u32 {v(BO)}, 0x3f80, {v(BO + 4)}")
    G.stamp(3)
    TF = 176
    for n in range(7):
        P("s_barrier")
        if n == 0:
            G.stamp(5)
            for j in range(4):
                P(f"ds_read_b128 {v(TF + 4 * j, 4)}, {v(vTT)} offset:{j * 1024}")
                lg.add(("t", j))
        rdx(n)
        for j in range(4):
            t = 4 * n + j
            G.wlg(("x", t))
            c = "0" if t == 0 else v(DACC2, 16)
            P(f"v_mfma_f32_32x32x16_bf16 {v(DACC2, 16)}, {xreg(t)}, {v(TF + 4 * j, 4)}, {c}")
        if n < 6:
            for j in range(4):
                P(f"ds_read_b128 {v(TF + 4 * j, 4)}, {v(vTT)} offset:{(4 * n + 4 + j) * 1024}")
                lg.add(("t", 4 * n + 4 + j))
        if n == 4:
            tag_ready()
            for dt in range(2):
                P(f"v_mfma_f32_32x32x16_bf16 {v(ACA + 16 * dt, 16)}, {v(BA, 4)}, {v(BO + 4 * dt, 4)}, 0")
    G.stamp(4)
    P("s_barrier")
    G.stamp(6)
    w1_rd(0, 0)
    w1_rd(0, 1)
    xd = [f"v_cvt_pk_bf16_f32 {v(TMP + i)}, {v(DACC2 + 2 * i)}, {v(DACC2 + 2 * i + 1)}" for i in range(8)]
    for pr in range(2):
        o = TMP + 4 * pr
        xd.append(f"v_permlane16_swap_b32 {v(o)}, {v(o + 2)}")
        xd.append(f"v_permlane16_swap_b32 {v(o + 1)}, {v(o + 3)}")

    def wr(addr, o, off):
        P(f"ds_write_b128 {v(addr)}, {v(o, 4)} offset:{off}")
        lg.add("wr")

    for pr in range(2):
        xd.append(lambda pr=pr: wr(xa, TMP + 4 * pr, 64 * pr))
    for dt in range(2):
        xd.append(f"v_mfma_f32_32x32x16_bf16 {v(ACC + 16 * dt, 16)}, {v(BA + 4, 4)}, {v(BO + 4 * dt, 4)}, 0")
    FL.add(xd)
    for t in range(56):
        if t == XDB:
            assert not FL.q or t > 8
            P("s_waitcnt lgkmcnt(0)")
            P("s_barrier")
        if t % 8 == 7 and t < 55:
            P("s_waitcnt lgkmcnt(0)")
            if "barst" in OPT:
                G.stamp(47 + 2 * (t // 8))
            P("s_barrier")
            if "barst" in OPT:
                G.stamp(48 + 2 * (t // 8))
            if t == 31:
                G.stamp(17)
        if t == 28:
            G.stamp(7)
            FL.add([(lambda i=i: wr(xa + 1, ACA + 4 * i, (4 + (i >> 1)) * 8192 + (i & 1) * 1024)) for i in range(8)])
        acc = ACA if t < 28 else ACC
        for dt in range(2):
            G.wlg(("b", t, dt))
            d = v(acc + 16 * dt, 16)
            P(f"v_mfma_f32_32x32x16_bf16 {d}, {v(YW + (t & 1) * 8 + 4 * dt, 4)}, {xreg(t % 28)}, {d}")
            if t + 1 < 56:
                w1_rd(t + 1, dt)
            FL.emit(4 if t < 28 else 2)
    G.stamp(18)
    G.arrive(2)
    P(f"s_add_u32 {s(sT2)}, {s(sLW)}, 0x10000")
    P(f"s_add_u32 {s(sXO)}, {s(sWO)}, {64 * 896}")
    P(f"s_add_u32 {s(sWO)}, {s(sWO)}, {256 * 896}")
    wx = [(lambda st=st, hf=hf: issue_w2(st, hf, sT2, sXO, "w2x")) for st in range(8) for hf in range(2)]
    for fs in range(4):
        m = mish(fs)
        if fs == 0:
            run(m)
            G.check(2, 4)
        else:
            per = len(m) // (NX + 1) + 1
            for i in range(0, len(m), per):
                if i and wx:
                    wx.pop(0)()
                run(m[i:i + per])
    G.stamp(8)
    f3_addr()
    act_base()
    mg = m_frags(VF)
    run(mg[:YM1])
    G.wvm("act")
    G.signal(s(sFL))
    G.stamp(9)
    G.check(4, 4)
    for st in range(6):
        rd_w2(st)
    run(wx[:WXA])
    P("s_waitcnt lgkmcnt(0)")
    lg.clear()
    G.poll_issue()
    run(wx[WXA:])
    for st in range(8, 14):
        issue_w2(st, 0)
        issue_w2(st, 1)
    G.stamp(10)
    run(mg[YM1:YM2])
    G.stamp(11)
    G.poll_check()
    G.stamp(12)
    for st in range(DEPTH):
        issue_act(st)
    G.wvm(("w2x", 7))
    G.arrive(3)
    G.stamp(23)
    P("s_waitcnt lgkmcnt(0)")
    FL.add(mg[YM2:])
    g0 = vB
    state = {"arr": False}

    def v_setup():
        P(f"v_lshlrev_b32 {v(vT)}, 2, {v(vM)}")
        P(f"s_lshl_b32 {s(sXO)}, {s(sRB64)}, 8")
        P(f"s_add_u32 {s(sT1)}, {s(sXO)}, {WS_G}")
        for nt in range(2):
            P(f"buffer_load_dword {v(g0 + nt)}, {v(vT)}, {s(WS_, 4)}, {s(sT1)} offen offset:{128 * nt} sc1")
        vm.add("g", 2)
        P(f"v_lshlrev_b32 {v(vT)}, 13, {v(vG4)}")
        P(f"v_lshl_add_u32 {v(vT)}, {v(vN)}, 4, {v(vT)}")
        P(f"s_mul_i32 {s(sT2)}, {s(sRG)}, {56 * 8192}")
        P(f"s_add_u32 {s(sXO)}, {s(sXO)}, {s(sT2)}")

    def v_issue(i):
        L = G.label("L_vs")
        if i == 7:
            P(f"s_cmp_lt_u32 {s(sRG)}, 3")
            P(f"s_cbranch_scc1 {L}")
        for half in range(2):
            P(f"s_add_u32 m0, {s(sLW)}, {((i + 6) & 7) * 8192 + half * 1024}")
            P(f"buffer_load_dwordx4 {v(vT)}, {s(V_, 4)}, {s(sXO)} offen sc1 lds")
            P(f"s_add_u32 {s(sXO)}, {s(sXO)}, {4 * 8192}")
            vm.add(("v", i), 1, "XY" if i < 7 else "X")
        if i == 7:
            P(f"{L}:")

    def y_after(st):
        if st == F4_AT:
            P(f"s_mul_i32 {s(sT1)}, {s(sRG)}, 56")
            P(f"v_add_u32 {v(vPA)}, {s(sT1)}, {v(vL)}")
            P(f"v_min_u32 {v(vPA)}, 224, {v(vPA)}")
            P(f"s_lshr_b32 {s(sT1)}, {s(sRB64)}, 3")
            P(f"s_lshl_b32 {s(sT1)}, {s(sT1)}, 8")
            P(f"s_add_u32 {s(sT1)}, {s(sT1)}, {WS_F4 // FS}")
            P(f"v_add_u32 {v(vPA)}, {s(sT1)}, {v(vPA)}")
            P(f"v_mul_u32_u24 {v(vPA)}, {FS}, {v(vPA)}")
            G.poll_issue()

    ffn_loop(y_after, hi=VCHK + 1)
    assert F4_AT <= VCHK
    G.stamp(20)
    G.wvm("poll")
    P(f"v_cmp_ne_u32 vcc, {s(sTAG)}, {v(vPR)}")
    P("s_cbranch_vccz L_vfast")
    sv = ({k: list(q) for k, q in vm.q.items()}, {k: list(q) for k, q in lg.q.items()}, list(FL.q))
    ffn_loop(lo=VCHK + 1)
    G.poll_issue()
    G.poll_check()
    G.stamp(14)
    v_setup()
    for i in range(8):
        v_issue(i)
    vm_slow = {k: list(q) for k, q in vm.q.items()}
    P("s_branch L_vjoin")
    P("L_vfast:")
    vm.q, lg.q, FL.q = sv
    v_setup()
    for i in range(VCHK - 5):
        v_issue(i)
    ffn_loop(lambda st: v_issue(st - 6), lo=VCHK + 1)
    P("L_vjoin:")
    vm.q = vm_slow
    G.stamp(13)
    og = vB + 2
    G.wvm("g")
    for nt in range(2):
        P(f"v_sub_f32 {v(og + 2 * nt)}, 1.0, {v(g0 + nt)}")
        P(f"v_cvt_pk_bf16_f32 {v(og + 2 * nt)}, {v(og + 2 * nt)}, {v(og + 2 * nt)}")
        P(f"v_lshlrev_b32 {v(og + 2 * nt)}, 16, {v(og + 2 * nt)}")
        P(f"v_add_f32 {v(og + 2 * nt)}, {v(og + 2 * nt)}, {v(og + 2 * nt)}")
    va = vTW
    P(f"v_lshl_add_u32 {v(va)}, {v(vM)}, 2, {s(sLW)}")
    P(f"v_lshl_add_u32 {v(va)}, {v(vH)}, 10, {v(va)}")
    P(f"v_add_u32 {v(va + 1)}, 128, {v(va)}")

    def rd_v(i):
        b = VF + (i & 1) * 8
        off = ((i + 6) & 7) * 32
        for nt in range(2):
            for j in range(2):
                P(f"ds_read2st64_b32 {v(b + 4 * nt + 2 * j, 2)}, {v(va + nt)} offset0:{off + 2 * j} offset1:{off + 2 * j + 1}")
        lg.add(("v", i), 4)

    lg.clear()
    G.wvm(("v", 0))
    rd_v(0)
    for ti in range(4):
        for r in range(0, 16, 2):
            d = v(AC3 + ti * 16 + r, 2)
            P(f"v_pk_mul_f32 {d}, {d}, {v(og + 2 * (ti & 1), 2)} op_sel_hi:[1,0]")
    for i in range(8):
        if i == 7:
            P(f"s_cmp_lt_u32 {s(sRG)}, 3")
            P("s_cbranch_scc1 L_red")
        if i + 1 < 8:
            G.wvm(("v", i + 1))
            rd_v(i + 1)
        G.wlg(("v", i))
        b = VF + (i & 1) * 8
        for dt in range(2):
            for nt in range(2):
                d = v(AC3 + (dt * 2 + nt) * 16, 16)
                P(f"v_mfma_f32_32x32x16_bf16 {d}, {v(MF + (i * 2 + dt) * 4, 4)}, {v(b + 4 * nt, 4)}, {d}")

    P("L_red:")
    G.stamp(15)
    oa, gr = vXR, vXR + 3
    P(f"s_lshl_b32 {s(sT2)}, {s(sRB64)}, 6")
    P(f"s_lshl_b32 {s(sT0)}, {s(sW)}, 3")
    P(f"s_add_u32 {s(sT0)}, {s(sT0)}, {s(sT2)}")
    P(f"v_lshrrev_b32 {v(oa + 1)}, 3, {v(vL)}")
    P(f"v_add_u32 {v(oa + 1)}, {s(sT0)}, {v(oa + 1)}")
    P(f"v_lshlrev_b32 {v(vT)}, 2, {v(oa + 1)}")
    P(f"s_mov_b32 {s(sT0)}, {WS_G}")
    P(f"buffer_load_dword {v(gr)}, {v(vT)}, {s(WS_, 4)}, {s(sT0)} offen sc1")
    wa = TMP
    P(f"v_add_u32 {v(wa)}, {s(sLW)}, {v(vLA)}")
    for c in range(1, 4):
        P(f"v_xor_b32 {v(wa + c)}, {64 * c}, {v(wa)}")
    P("s_waitcnt lgkmcnt(0)")
    for ti in range(4):
        for c in range(4):
            P(f"ds_write_b128 {v(wa + c)}, {v(AC3 + ti * 16 + 4 * c, 4)} offset:{(2 * ti + (c >> 1)) * 8192 + (c & 1) * 1024}")
    row_of_p(P, oa, oa + 1, oa + 2)
    P(f"v_and_b32 {v(oa + 2)}, 7, {v(vL)}")
    P(f"v_lshl_add_u32 {v(oa)}, {v(oa + 2)}, 4, {v(oa)}")
    ra = TMP + 8
    P(f"v_and_b32 {v(ra + 1)}, 3, {v(vL)}")
    P(f"v_and_b32 {v(ra)}, 31, {v(oa + 1)}")
    P(f"v_lshlrev_b32 {v(ra + 2)}, 2, {v(ra + 1)}")
    P(f"v_xor_b32 {v(ra)}, {v(ra)}, {v(ra + 2)}")
    P(f"v_lshlrev_b32 {v(ra)}, 4, {v(ra)}")
    P(f"v_and_b32 {v(ra + 1)}, 1, {v(vL)}")
    P(f"v_lshl_add_u32 {v(ra)}, {v(ra + 1)}, 10, {v(ra)}")
    P(f"v_and_b32 {v(ra + 1)}, 2, {v(vL)}")
    P(f"v_lshl_add_u32 {v(ra)}, {v(ra + 1)}, 12, {v(ra)}")
    P(f"v_and_b32 {v(ra + 1)}, 4, {v(vL)}")
    P(f"v_lshl_add_u32 {v(ra)}, {v(ra + 1)}, 13, {v(ra)}")
    P(f"s_lshl_b32 {s(sT0)}, {s(sCH)}, 14")
    P(f"v_add_u32 {v(ra)}, {s(sT0)}, {v(ra)}")
    P(f"v_add_u32 {v(ra + 1)}, 0x10000, {v(ra)}")
    P(f"s_lshl_b32 {s(sT1)}, {s(sJM)}, 7")
    P("s_waitcnt lgkmcnt(0)")
    P("s_barrier")
    G.stamp(16)
    R = AC3
    for ww in range(8):
        for h in range(2):
            P(f"ds_read_b128 {v(R + ww * 8 + 4 * h, 4)}, {v(ra + (1 if ww < 4 else 0))} offset:{(ww & 3) * 2048 + h * 512}")
    P("s_waitcnt vmcnt(0)")
    P(f"v_sub_f32 {v(gr)}, 1.0, {v(gr)}")
    P(f"v_cvt_pk_bf16_f32 {v(gr)}, {v(gr)}, {v(gr)}")
    P(f"v_lshlrev_b32 {v(vB)}, 16, {v(gr)}")
    P(f"v_add_f32 {v(vB)}, {v(vB)}, {v(vB)}")
    P("s_waitcnt lgkmcnt(8)")
    for r in range(0, 8, 2):
        P(f"v_pk_add_f32 {v(R + r, 2)}, {v(R + r, 2)}, {v(R + 8 + r, 2)}")
        P(f"v_pk_add_f32 {v(R + 16 + r, 2)}, {v(R + 16 + r, 2)}, {v(R + 24 + r, 2)}")
        P(f"v_pk_add_f32 {v(R + r, 2)}, {v(R + r, 2)}, {v(R + 16 + r, 2)}")
    P("s_waitcnt lgkmcnt(0)")
    for r in range(0, 8, 2):
        P(f"v_pk_add_f32 {v(R + 32 + r, 2)}, {v(R + 32 + r, 2)}, {v(R + 40 + r, 2)}")
        P(f"v_pk_add_f32 {v(R + 48 + r, 2)}, {v(R + 48 + r, 2)}, {v(R + 56 + r, 2)}")
        P(f"v_pk_add_f32 {v(R + 32 + r, 2)}, {v(R + 32 + r, 2)}, {v(R + 48 + r, 2)}")
        P(f"v_pk_fma_f32 {v(R + r, 2)}, {v(R + r, 2)}, {v(vB, 2)}, {v(R + 32 + r, 2)} op_sel_hi:[1,0,1]")
    for i in range(4):
        P(f"v_cvt_pk_bf16_f32 {v(R + 8 + i)}, {v(R + 2 * i)}, {v(R + 2 * i + 1)}")
    P(f"buffer_store_dwordx4 {v(R + 8, 4)}, {v(oa)}, {s(OUT_, 4)}, {s(sT1)} offen")
    P(f"s_add_u32 {s(sT0)}, s2, {s(sW)}")
    P(f"s_cmp_eq_u32 {s(sT0)}, 0")
    P("s_cbranch_scc0 L_fin")
    P(f"s_mov_b32 {s(sT0)}, {WS_EP}")
    G.signal(s(sT0))
    P("s_branch L_fin")

    P("L_y1:")
    vm.q = y_vm
    lg.clear()
    G.stamp(3)
    P(f"s_mov_b32 {s(sLX2)}, {s(sLA)}")
    w2e = [(lambda st=st, hf=hf: issue_w2(st, hf, sLX2, sWO, "w2x")) for st in range(8) for hf in range(2)]

    def y_bar(n):
        assert vm.has(("st", n))
        if "barst" in OPT and n >= 8:
            G.stamp(47 + 2 * (n - 8))
        P(f"s_waitcnt vmcnt({vm.n(('st', n))})")
        if "barst" in OPT and n >= 8:
            G.stamp(48 + 2 * (n - 8))
        P("s_barrier")
        if n + LA < NSTG:
            run(stage(n + LA))

    cs_ = p2_consts(TMP)
    per = len(cs_) // 6 + 1
    for n in range(8):
        y_bar(n)
        if n == 0:
            G.stamp(4)
            ptr_setup(False)
            rd_setup()
            run(late_setup())
            xa = vB
            P(f"s_mul_i32 {s(sT2)}, {s(sRG)}, 2304")
            P(f"s_add_u32 {s(sT2)}, {s(sT2)}, {L_XT}")
            P(f"v_lshrrev_b32 {v(TMP)}, 3, {v(vL)}")
            P(f"v_and_b32 {v(TMP + 1)}, 7, {v(vL)}")
            P(f"v_lshlrev_b32 {v(TMP + 1)}, 4, {v(TMP + 1)}")
            P(f"v_mul_u32_u24 {v(xa)}, 144, {v(TMP)}")
            P(f"v_add3_u32 {v(xa)}, {v(xa)}, {v(TMP + 1)}, {s(sT2)}")
            P(f"v_lshl_add_u32 {v(vT)}, {v(TMP)}, 13, {v(TMP + 1)}")
            P(f"v_add_u32 {v(xa + 1)}, {s(sLA)}, {v(vLA)}")
            P(f"s_mov_b32 {s(sK)}, s2")
            f1_addr()
        elif n < 7:
            run(cs_[(n - 1) * per:n * per])
    G.stamp(6)
    tag_ready()
    P(f"s_lshl_b32 {s(sXO)}, {s(sQ)}, 17")
    P(f"s_lshl_b32 {s(sT1)}, {s(sSG)}, 7")
    P(f"s_add_u32 {s(sXO)}, {s(sXO)}, {s(sT1)}")
    P(f"s_add_u32 {s(sXO)}, {s(sXO)}, {WS_XD}")
    P(f"s_add_u32 {s(sT2)}, {s(sXO)}, {8 * 8192}")
    P("s_barrier")
    for pr in range(2):
        P(f"ds_read_b128 {v(TMP + 4 * pr, 4)}, {v(xa)} offset:{pr * 8 * 144}")
    for pr in range(2):
        P(f"s_waitcnt lgkmcnt({1 - pr})")
        P(f"buffer_store_dwordx4 {v(TMP + 4 * pr, 4)}, {v(vT)}, {s(WS_, 4)}, {s(sT2 if pr else sXO)} offen sc1")
        vm.add("xd")
    G.stamp(5)
    P(f"s_lshl_b32 {s(sXO)}, {s(sQ)}, 6")
    P(f"s_add_u32 {s(sXO)}, {s(sXO)}, {s(sSG)}")
    P(f"s_mul_i32 {s(sXO)}, {s(sXO)}, {FS}")
    P(f"s_add_u32 {s(sXO)}, {s(sXO)}, {WS_F1}")
    for n in range(8, 12):
        y_bar(n)
        if n == F1_N:
            G.wvm("xd")
            G.signal(s(sXO))
            G.stamp(19)
        if n == 10:
            run(w2e[:YW2])
            w2e = w2e[YW2:]
    G.stamp(7)
    for i in range(8):
        P(f"ds_read_b128 {v(ACC + 4 * i, 4)}, {v(xa + 1)} offset:{(4 + (i >> 1)) * 8192 + (i & 1) * 1024}")
    P("s_waitcnt lgkmcnt(6)")
    for fs in range(4):
        m = mish(fs, pk=(fs >= XPK))
        if fs == 0:
            run(m[:16])
            P("s_waitcnt lgkmcnt(0)")
            m = m[16:]
        per = len(m) // (NY + 1) + 1
        for i in range(0, len(m), per):
            if i and w2e:
                w2e.pop(0)()
            run(m[i:i + per])
        if fs < 2:
            y_bar(12 + fs)
            G.stamp(17 + fs)
        if fs == 2:
            G.poll_issue()
    run(w2e)
    G.stamp(8)

    P("L_p2:")
    if YPRIO:
        P(f"s_setprio {YPRIO}")
    XF, DR, DI, B2, WD, GG, WR, WI = 0, 64, 72, 80, 88, 96, TMP + 16, TMP + 24
    def ysig():
        L = G.label("L_ns")
        P(f"s_cmp_ge_u32 {s(sJ7)}, 4")
        P(f"s_cbranch_scc1 {L}")
        G.signal(s(sFL))
        P(f"{L}:")

    G.poll_check(slow=ysig)
    G.stamp(9)
    P(f"s_cmp_eq_u32 {s(sK)}, 224")
    P(f"s_cselect_b32 {s(sT2)}, 0, {s(sK)}")
    P(f"s_lshl_b32 {s(sT1)}, {s(sRG)}, 11")
    P(f"s_lshl_b32 {s(sT2)}, {s(sT2)}, 13")
    P(f"s_add_u32 {s(sT2)}, {s(sT2)}, {s(sT1)}")
    P(f"s_add_u32 {s(sT2)}, {s(sT2)}, {WS_XD}")
    P(f"s_add_u32 m0, {s(sT1)}, {L_XS}")
    for mt in range(2):
        P(f"buffer_load_dwordx4 {v(vLA)}, {s(WS_, 4)}, {s(sT2)} offen offset:{mt * 1024} sc1 lds")
    vm.add("xs", 2)
    P(f"s_lshl_b32 {s(sT0)}, {s(sK)}, 13")
    P(f"s_add_u32 {s(sT2)}, {s(sT0)}, {s(sT1)}")
    P(f"s_add_u32 {s(sT0)}, {s(sT2)}, {WS_WT}")
    P(f"s_add_u32 {s(sT1)}, {s(sT1)}, {WS_G}")
    for mt in range(2):
        P(f"buffer_load_dwordx4 {v(WD + 4 * mt, 4)}, {v(vLA)}, {s(WS_, 4)}, {s(sT0)} offen offset:{mt * 1024} sc1")
    for nt in range(2):
        P(f"buffer_load_dwordx4 {v(GG + 4 * nt, 4)}, {v(vLA)}, {s(WS_, 4)}, {s(sT0 if 'nog' in OPT else sT1)} offen offset:{nt * 1024} sc1")
    vm.add("wd", 2)
    vm.add("gg", 2)
    P(f"v_add_u32 {v(vT)}, {L_XS}, {v(vLA)}")
    P(f"s_mov_b32 {s(sSC)}, {f32(2.0 / (S_ * D_))}")
    G.wvm("act", ("w2x", 7))
    ysig()
    G.arrive(4)
    G.stamp(21)
    P(f"s_waitcnt vmcnt(4)")
    G.stamp(22)
    G.swbar(0, 4)
    G.stamp(10)
    P(f"s_cmp_eq_u32 {s(sK)}, 0")
    P("s_cbranch_scc1 L_real")
    P(f"s_cmp_eq_u32 {s(sK)}, 224")
    P("s_cbranch_scc1 L_real1")
    for i in range(8):
        P(f"ds_read_b128 {a(XF + 4 * i, 4)}, {v(vT)} offset:{i * 1024}")
    P("s_branch L_go")
    P("L_real1:")
    P(f"v_add_u32 {v(vT)}, 8, {v(vT)}")
    P("L_real:")
    for i in range(8):
        P(f"ds_read_b64 {a(XF + 4 * i, 2)}, {v(vT)} offset:{i * 1024}")
    for i in range(8):
        P(f"v_accvgpr_write_b32 {a(XF + 4 * i + 2)}, 0")
        P(f"v_accvgpr_write_b32 {a(XF + 4 * i + 3)}, 0")
    P(f"s_mov_b32 {s(sSC)}, {f32(1.0 / (S_ * D_))}")
    P("L_go:")

    def cr(base, i):
        return v(base + 6 * i + 2, 4)

    def ci(base, i):
        return v(base + 6 * i, 4)

    for ks in range(4):
        P(f"s_waitcnt lgkmcnt({6 - 2 * ks})")
        for mt in range(2):
            for d, cm in ((DR, cr), (DI, ci)):
                c = "0" if ks == 0 else v(d + 4 * mt, 4)
                P(f"v_mfma_f32_16x16x32_bf16 {v(d + 4 * mt, 4)}, {a(XF + (ks * 2 + mt) * 4, 4)}, {cm(C64, ks)}, {c}")
    FL.emit(W2P)
    P("s_waitcnt vmcnt(2)")
    for i in range(8):
        P(f"v_lshlrev_b32 {v(WR + i)}, 16, {v(WD + i)}")
        P(f"v_and_b32 {v(WI + i)}, 0xffff0000, {v(WD + i)}")

    def cmul(c_r, c_i, sgn, swap):
        ng = "neg_lo:[0,1,0] neg_hi:[0,1,0]"
        for i in range(0, 8, 2):
            a_, b_ = TMP + i, TMP + 8 + i
            P(f"v_pk_mul_f32 {v(a_, 2)}, {v(DR + i, 2)}, {v(c_r + i, 2)}")
            P(f"v_pk_mul_f32 {v(b_, 2)}, {v(DI + i, 2)}, {v(c_r + i, 2)}")
            P(f"v_pk_fma_f32 {v(a_, 2)}, {v(DI + i, 2)}, {v(c_i + i, 2)}, {v(a_, 2)} {ng if sgn > 0 else ''}")
            P(f"v_pk_fma_f32 {v(b_, 2)}, {v(DR + i, 2)}, {v(c_i + i, 2)}, {v(b_, 2)} {ng if sgn < 0 else ''}")
        first, second = (TMP + 8, TMP) if swap else (TMP, TMP + 8)
        for mt in range(2):
            for j in range(2):
                P(f"v_cvt_pk_bf16_f32 {v(B2 + 4 * mt + j)}, {v(first + 4 * mt + 2 * j)}, {v(first + 4 * mt + 2 * j + 1)}")
                P(f"v_cvt_pk_bf16_f32 {v(B2 + 4 * mt + 2 + j)}, {v(second + 4 * mt + 2 * j)}, {v(second + 4 * mt + 2 * j + 1)}")

    cmul(T1C, T1S, -1, False)
    for ks in range(2):
        for mt in range(2):
            for d, em in ((DR, cr), (DI, ci)):
                c = "0" if ks == 0 else v(d + 4 * mt, 4)
                P(f"v_mfma_f32_16x16x32_bf16 {v(d + 4 * mt, 4)}, {em(E32, mt * 2 + ks)}, {v(B2 + 4 * ks, 4)}, {c}")
    FL.emit(W2P)
    P("s_waitcnt vmcnt(0)")
    for i in range(8):
        P(f"v_mul_f32 {v(GG + i)}, {s(sSC)}, {v(GG + i)}")
    cmul(WR, WI, +1, True)
    for ks in range(2):
        for nt in range(2):
            for d, em in ((DI, cr), (DR, ci)):
                c = "0" if ks == 0 else v(d + 4 * nt, 4)
                P(f"v_mfma_f32_16x16x32_bf16 {v(d + 4 * nt, 4)}, {v(B2 + 4 * ks, 4)}, {em(E32, nt * 2 + ks)}, {c}")
    FL.emit(W2P)
    P(f"s_lshl_b32 {s(sT0)}, {s(sRG)}, 11")
    P(f"v_add_u32 {v(vT)}, {L_EX}, {v(vLA)}")
    P(f"v_add_u32 {v(vB)}, {s(sT0)}, {v(vT)}")
    cmul(T2C, T2S, +1, True)
    P(f"ds_write_b128 {v(vB)}, {v(B2, 4)}")
    P(f"ds_write_b128 {v(vB)}, {v(B2 + 4, 4)} offset:1024")
    G.arrive(1)
    f3_addr()
    G.check(1, 4)
    for i in range(8):
        P(f"ds_read_b128 {a(XF + 4 * i, 4)}, {v(vT)} offset:{i * 1024}")
    for ks in range(4):
        P(f"s_waitcnt lgkmcnt({6 - 2 * ks})")
        for nt in range(2):
            for d, cm in ((DI, cr), (DR, ci)):
                c = "0" if ks == 0 else v(d + 4 * nt, 4)
                P(f"v_mfma_f32_16x16x32_bf16 {v(d + 4 * nt, 4)}, {cm(C64, ks)}, {a(XF + (ks * 2 + nt) * 4, 4)}, {c}")
    P(f"s_add_u32 {s(sT2)}, {s(sT2)}, {WS_V}")
    P(f"s_lshl_b32 {s(sFL)}, {s(sRG)}, 8")
    P(f"s_add_u32 {s(sFL)}, {s(sFL)}, {s(sK)}")
    P(f"s_mul_i32 {s(sFL)}, {s(sFL)}, {FS}")
    P(f"s_add_u32 {s(sFL)}, {s(sFL)}, {WS_F4}")
    act_base()
    for i in range(0, 8, 2):
        P(f"v_pk_mul_f32 {v(DR + i, 2)}, {v(DR + i, 2)}, {v(GG + i, 2)}")
        P(f"v_pk_mul_f32 {v(DI + i, 2)}, {v(DI + i, 2)}, {v(GG + i, 2)}")
    for nt in range(2):
        for r in range(4):
            P(f"v_cvt_pk_bf16_f32 {v(B2 + 4 * nt + r)}, {v(DR + 4 * nt + r)}, {v(DI + 4 * nt + r)}")
        P(f"buffer_store_dwordx4 {v(B2 + 4 * nt, 4)}, {v(vLA)}, {s(WS_, 4)}, {s(sT2)} offen offset:{nt * 1024} sc1")
    vm.add("vst", 2)
    G.stamp(11)
    P(f"s_cmp_ge_u32 {s(sJ7)}, 4")
    P("s_cbranch_scc0 L_p3")
    P("s_waitcnt vmcnt(0)")
    G.signal(s(sFL), g="")
    P("s_branch L_fin")
    P("L_p3:")
    if YPRIO:
        P("s_setprio 0")
    P(f"s_add_u32 {s(sWO)}, {s(sWO)}, {64 * 896}")
    G.wvm("vst")
    G.signal(s(sFL))
    G.poll_issue()
    G.check(3, 4)
    for st in range(6):
        rd_w2(st)
    P("s_waitcnt lgkmcnt(0)")
    lg.clear()
    for st in range(8, 14):
        issue_w2(st, 0)
        issue_w2(st, 1)
    G.stamp(23)
    G.poll_check()
    G.stamp(12)
    for st in range(DEPTH):
        issue_act(st)
    ffn_loop()
    G.stamp(13)
    P("s_branch L_red")

    P("L_side:")
    sU = sRB
    P(f"v_mov_b32 {v(t0)}, 0")
    P(f"v_lshlrev_b32 {v(t1)}, 2, {v(vL)}")
    P(f"v_add_u32 {v(t1)}, {L_SY}, {v(t1)}")
    P(f"ds_write_b32 {v(t1)}, {v(t0)}")
    P("s_waitcnt lgkmcnt(0)")
    G.stamp(2)
    P(f"s_load_dword {s(sTAG)}, s[24:25], {WS_EP}")
    G.srd(X_, 4, S_ * D_ * 2)
    G.srd(W2_, 16, F_ * D_ * 2)
    G.srd(WS_, 24, WS_END)
    G.srd(WR_, 6, S_ * 225 * 2)
    G.srd(WI_, 8, S_ * 225 * 2)
    G.srd(B1_, 18, D_ * 2)
    P(f"s_sub_u32 {s(sU)}, s2, 224")
    P(f"s_and_b32 {s(sT0)}, {s(sU)}, 7")
    P(f"s_lshl_b32 {s(sT0)}, {s(sT0)}, 2")
    P(f"s_add_u32 {s(sT0)}, {s(sT0)}, {s(sRG)}")
    P(f"s_lshl_b32 {s(sT0)}, {s(sT0)}, 2")
    P(f"s_lshr_b32 {s(sT1)}, {s(sU)}, 3")
    P(f"s_add_u32 {s(sT0)}, {s(sT0)}, {s(sT1)}")
    P(f"s_mul_i32 {s(sXO)}, {s(sT0)}, 7200")
    P(f"s_lshl_b32 {s(sT0)}, {s(sW)}, 13")
    P(f"s_cmp_lg_u32 {s(sCH)}, 0")
    P(f"s_cselect_b32 {s(WR_)}, {s(WI_)}, {s(WR_)}")
    P(f"s_cselect_b32 {s(WR_ + 1)}, {s(WI_ + 1)}, {s(WR_ + 1)}")
    for half in range(2):
        P(f"s_add_u32 m0, {s(sT0)}, {half * 4096}")
        P(f"s_add_u32 {s(sT1)}, {s(sXO)}, {half * 4096}")
        for i in range(4):
            if half == 1 and i == 3:
                P("s_mov_b64 exec, 3")
            P(f"buffer_load_dwordx4 {v(vLA)}, {s(WR_, 4)}, {s(sT1)} offen offset:{i * 1024} lds")
    P("s_mov_b64 exec, -1")
    XG, GW = 64, 96
    oa = TMP + 4
    P(f"s_lshl_b32 {s(sT0)}, {s(sU)}, 6")
    P(f"s_lshl_b32 {s(sT1)}, {s(sW)}, 3")
    P(f"s_add_u32 {s(sT2)}, {s(sT0)}, {s(sT1)}")
    P(f"v_lshrrev_b32 {v(oa + 1)}, 3, {v(vL)}")
    P(f"v_add_u32 {v(oa + 1)}, {s(sT2)}, {v(oa + 1)}")
    row_of_p(P, oa, oa + 1, oa + 2)
    P(f"v_and_b32 {v(vT)}, 7, {v(vL)}")
    P(f"v_lshlrev_b32 {v(vT)}, 4, {v(vT)}")
    P(f"v_add_u32 {v(oa)}, {v(oa)}, {v(vT)}")
    for i in range(7):
        P(f"buffer_load_dwordx4 {v(XG + 4 * i, 4)}, {v(oa)}, {s(X_, 4)}, 0 offen offset:{i * 128}")
        P(f"buffer_load_dwordx4 {v(GW + 4 * i, 4)}, {v(vT)}, {s(B1_, 4)}, 0 offen offset:{i * 128}")
    P("s_waitcnt lgkmcnt(0)")
    P(f"s_mul_i32 {s(sTAG)}, {s(sTAG)}, 1664525")
    P(f"s_add_u32 {s(sTAG)}, {s(sTAG)}, 1013904223")
    la, ga_, o = TMP, TMP + 1, 128
    P(f"s_lshl_b32 {s(sT0)}, {s(sW)}, 2")
    P(f"v_add_u32 {v(TMP + 2)}, {s(sT0)}, {v(vG4)}")
    P(f"v_mul_u32_u24 {v(la)}, 450, {v(vN)}")
    P(f"v_lshl_add_u32 {v(la)}, {v(TMP + 2)}, 1, {v(la)}")
    P(f"v_lshlrev_b32 {v(ga_)}, 13, {v(TMP + 2)}")
    P(f"v_lshl_add_u32 {v(ga_)}, {v(vN)}, 4, {v(ga_)}")
    P(f"s_lshl_b32 {s(sT0)}, {s(sU)}, 8")
    P(f"s_add_u32 {s(sT0)}, {s(sT0)}, {WS_WT}")
    P("s_waitcnt vmcnt(14)")
    P("s_barrier")
    G.stamp(3)

    def wt_rd(i):
        for r in range(4):
            P(f"ds_read_u16 {v(o + 8 * i + r)}, {v(la)} offset:{r * 8192 + 64 * i}")
            P(f"ds_read_u16 {v(o + 8 * i + 4 + r)}, {v(la)} offset:{32768 + r * 8192 + 64 * i}")

    wt_rd(0)
    for i in range(8):
        if i == 7:
            P(f"s_cmp_lg_u32 {s(sW)}, 0")
            P("s_cbranch_scc1 L_wtdone")
        if i + 1 < 8:
            wt_rd(i + 1)
        P(f"s_waitcnt lgkmcnt({8 if i < 7 else 0})")
        for r in range(4):
            P(f"v_lshl_or_b32 {v(o + 8 * i + r)}, {v(o + 8 * i + 4 + r)}, 16, {v(o + 8 * i + r)}")
        P(f"buffer_store_dwordx4 {v(o + 8 * i, 4)}, {v(ga_)}, {s(WS_, 4)}, {s(sT0)} offen sc1")
        P(f"s_add_u32 {s(sT0)}, {s(sT0)}, {32 * 8192}")
    P("L_wtdone:")
    G.stamp(4)
    P("s_waitcnt vmcnt(7) lgkmcnt(0)")
    z, xa2, ga2 = TMP, TMP + 8, TMP + 12
    P(f"s_mov_b32 {s(sT1)}, 0xffff0000")
    P(f"v_mov_b32 {v(z)}, 0")
    P(f"v_mov_b32 {v(z + 1)}, 0")
    for i in range(28):
        xx, gg = xa2 + 2 * (i & 1), ga2 + 2 * (i & 1)
        P(f"v_lshlrev_b32 {v(xx)}, 16, {v(XG + i)}")
        P(f"v_and_b32 {v(xx + 1)}, {s(sT1)}, {v(XG + i)}")
        P(f"v_lshlrev_b32 {v(gg)}, 16, {v(GW + i)}")
        P(f"v_and_b32 {v(gg + 1)}, {s(sT1)}, {v(GW + i)}")
        P(f"v_pk_mul_f32 {v(xx, 2)}, {v(xx, 2)}, {v(gg, 2)}")
        P(f"v_cvt_pk_bf16_f32 {v(gg)}, {v(xx)}, {v(xx + 1)}")
        P(f"v_lshlrev_b32 {v(xx)}, 16, {v(gg)}")
        P(f"v_and_b32 {v(xx + 1)}, {s(sT1)}, {v(gg)}")
        P(f"v_pk_add_f32 {v(z, 2)}, {v(z, 2)}, {v(xx, 2)}")
    P(f"v_add_f32 {v(z)}, {v(z)}, {v(z + 1)}")
    P(f"v_add_f32_dpp {v(z)}, {v(z)}, {v(z)} quad_perm:[1,0,3,2] row_mask:0xf bank_mask:0xf")
    P(f"v_add_f32_dpp {v(z)}, {v(z)}, {v(z)} quad_perm:[2,3,0,1] row_mask:0xf bank_mask:0xf")
    P(f"v_add_f32_dpp {v(z)}, {v(z)}, {v(z)} row_half_mirror row_mask:0xf bank_mask:0xf")
    P(f"v_cvt_pk_bf16_f32 {v(z)}, {v(z)}, {v(z)}")
    P(f"v_lshlrev_b32 {v(z)}, 16, {v(z)}")
    P(f"v_mul_f32 {v(z)}, {f32(-LOG2E)}, {v(z)}")
    P(f"v_exp_f32 {v(z)}, {v(z)}")
    P(f"v_add_f32 {v(z)}, 1.0, {v(z)}")
    P(f"v_rcp_f32 {v(z)}, {v(z)}")
    P(f"v_cvt_pk_bf16_f32 {v(z)}, {v(z)}, {v(z)}")
    P(f"v_lshlrev_b32 {v(z)}, 16, {v(z)}")
    P(f"v_and_b32 {v(vT)}, 63, {v(oa + 1)}")
    P(f"v_lshlrev_b32 {v(vT)}, 2, {v(vT)}")
    P(f"v_add_u32 {v(vT)}, {L_GT}, {v(vT)}")
    P(f"ds_write_b32 {v(vT)}, {v(z)}")
    P("s_waitcnt vmcnt(0) lgkmcnt(0)")
    P("s_barrier")
    G.stamp(5)
    P(f"s_cmp_eq_u32 {s(sW)}, 0")
    P("s_cbranch_scc0 L_sig2")
    P(f"v_add_u32 {v(vT)}, {L_GT}, {v(vLA)}")
    P(f"ds_read_b128 {v(TMP + 8, 4)}, {v(vT)}")
    P(f"s_lshl_b32 {s(sT0)}, {s(sU)}, 8")
    P(f"s_add_u32 {s(sT0)}, {s(sT0)}, {WS_G}")
    P("s_waitcnt lgkmcnt(0)")
    P("s_mov_b64 exec, 0xffff")
    P(f"buffer_store_dwordx4 {v(TMP + 8, 4)}, {v(vLA)}, {s(WS_, 4)}, {s(sT0)} offen sc1")
    P("s_mov_b64 exec, -1")
    P("s_waitcnt vmcnt(0)")
    P(f"s_mul_i32 {s(sT0)}, {s(sU)}, {FS}")
    P(f"s_add_u32 {s(sT0)}, {s(sT0)}, {WS_F2}")
    G.signal(s(sT0))
    P("L_sig2:")
    P(f"s_add_u32 {s(sT0)}, {s(sU)}, {s(sCH)}")
    P(f"s_cmp_eq_u32 {s(sT0)}, 0")
    P("s_cbranch_scc0 L_fin")
    for ins in p2_consts(TMP):
        P(ins)
    P(f"s_mov_b32 {s(sK)}, 224")
    f1_addr()
    G.poll_issue()
    P("s_waitcnt vmcnt(0)")
    P("s_branch L_p2")

    P("L_fin:")
    if AMP:
        P("s_waitcnt vmcnt(0)")
        G.stamp(24)
        P("s_cmp_eq_u32 s2, 8")
        P("s_cbranch_scc0 L_end")
        P(f"s_cmp_eq_u32 {s(sW)}, {AMP[2] if len(AMP) > 2 else 0}")
        P("s_cbranch_scc0 L_end")
        P("s_sub_u32 s96, s96, s94")
        P("s_mul_i32 s96, s96, 10")
        P("s_memrealtime s[98:99]")
        P("s_waitcnt lgkmcnt(0)")
        P("s_add_u32 s96, s96, s98")
        P("L_amp:")
        P("s_memrealtime s[98:99]")
        P("s_waitcnt lgkmcnt(0)")
        P("s_sub_u32 s97, s98, s96")
        P("s_cmp_lt_i32 s97, 0")
        P("s_cbranch_scc1 L_amp")
    if STAMP:
        P("s_waitcnt vmcnt(0)")
        G.stamp(24)
        G.stamp(25, True)
        P(f"s_getreg_b32 {s(sT0)}, hwreg(HW_REG_XCC_ID)")
        P(f"v_writelane_b32 v31, {s(sT0)}, 31")
        P(f"s_getreg_b32 {s(sT0)}, hwreg(HW_REG_HW_ID)")
        P(f"v_writelane_b32 v31, {s(sT0)}, 32")
        G.srd(X_, 24, 1 << 20, WS_TS)
        P(f"s_lshl_b32 {s(sT0)}, s2, 3")
        P(f"s_add_u32 {s(sT0)}, {s(sT0)}, {s(sW)}")
        P(f"s_lshl_b32 {s(sT0)}, {s(sT0)}, 8")
        P(f"v_lshlrev_b32 v1, 2, v1")
        P(f"buffer_store_dword v31, v1, {s(X_, 4)}, {s(sT0)} offen")
    P("L_end:")
    P("s_endpgm")
    G.P.resolve()
    out = HEADER
    out += f"; @launch grid=(256,1,1) block=(512,1,1) lds={LDS}\n"
    out += '.amdgcn_target "amdgcn-amd-amdhsa--gfx950"\n.text\n'
    out += G.P.text()
    out += f""".section .rodata,"a"
.p2align 6
.amdhsa_kernel {K}
  .amdhsa_next_free_vgpr 256
  .amdhsa_next_free_sgpr 102
  .amdhsa_accum_offset 192
  .amdhsa_group_segment_fixed_size 0
  .amdhsa_kernarg_size 88
  .amdhsa_user_sgpr_count 2
  .amdhsa_user_sgpr_kernarg_segment_ptr 1
  .amdhsa_system_sgpr_workgroup_id_x 1
.end_amdhsa_kernel
"""
    return out


def main():
    global STAMP, AMP
    if "--amp" in sys.argv:
        i = sys.argv.index("--amp")
        AMP = [int(x) for x in sys.argv[i + 1].split(",")]
        del sys.argv[i:i + 2]
    if "--stamp" in sys.argv:
        STAMP = True
        sys.argv.remove("--stamp")
    for x in list(sys.argv):
        if x.startswith("+"):
            OPT.add(x[1:])
            sys.argv.remove(x)
        elif "=" in x:
            k, val = x.split("=")
            globals()[k] = int(val)
            sys.argv.remove(x)
    out = build()
    path = sys.argv[1] if len(sys.argv) > 1 else f"cdna_kernels/{NAME}.s"
    open(path, "w").write(out)


if __name__ == "__main__":
    main()
```

```python
import sys
from asmlib import Prog, v, a, s, f32

NAME = "gated_mix__spectral_gfnet__dense_activation_mish__prompt"
S_, D_, F_ = 2048, 448, 1792
WS_EP = 0
FS = 16
FW = 4
F4_AT = 7
WS_F1 = 0x20000
WS_F2 = 0x8000
WS_F4 = 0x40000
WS_F3 = 0x80000
WS_FX = 0x60000
WS_G = 0x10000
WS_XD, WS_WT, WS_V, WS_ACT, WS_TS = 2 << 20, 4 << 20, 6 << 20, 8 << 20, 24 << 20
WS_END = 16 << 20
LOG2E = 1.4426950408889634
L_TAB, L_XS, L_EX, L_SY = 131072, 131072, 139264, 159744
LDS = 163840
STAMP = False
AMP = None
SPIN = 20000
OPT = set()

HEADER = """; Kernarg layout for this problem (88 bytes, ptrs only, base s[0:1]):
"""

X_, W1_, B1_, W2_, OUT_, WS_, V_, WR_, WI_ = 28, 32, 36, 40, 44, 48, 52, 56, 60
sW, sJ7, sJM, sXCD, sRB, sQ, sSG, sTAG = 64, 65, 66, 67, 68, 69, 70, 71
sT0, sT1, sT2, sXO, sAO, sFL, sK, sCNT = 72, 73, 74, 75, 76, 77, 78, 79
sRG, sCH, sWO, sLW, sA0, sA1, sRB64, sSC = 80, 81, 82, 83, 84, 85, 86, 87
sC0 = 88
sM = 90
sLX, sLA, sBO, sI1, sI3 = 20, 21, 22, 23, 3
sFAST, sXC = 92, 93
vPA, vPR = 8, 9
vEP = 23
vSG = 26
L_XT = 131072
L_GT = 147456
PRE_CONST = 200
XFILL = 1
F1_AT = 1
DEPTH = 4
vL, vM, vH, vN, vG4, vT, vLA = 1, 2, 3, 4, 5, 6, 7
vXD = 8
vAD, vWD = 10, 11
vXR = 12
vTA = 16
vTW = 18
vTT = 22
vB = 24
TMP = 32
ACC, DACC = 64, 96
C64, E32, T1C, T1S, T2C, T2S = 112, 136, 160, 168, 176, 184
MF = 128


class Cnt:
    def __init__(self, mx):
        self.q = {"X": [], "Y": []}
        self.mx = mx

    def add(self, tag, n=1, g="XY"):
        for k in g:
            self.q[k] += [tag] * n

    def has(self, *tags):
        return any(t in tags for q in self.q.values() for t in q)

    def n(self, *tags, g="XY"):
        best = self.mx
        for k in g:
            q = self.q[k]
            idx = [i for i, t in enumerate(q) if t in tags]
            if idx:
                best = min(best, len(q) - 1 - idx[-1])
        return best

    def clear(self):
        self.q = {"X": [], "Y": []}


class Gen:
    def __init__(self):
        self.P = Prog()
        self.vm = Cnt(63)
        self.lg = Cnt(15)
        self.nl = 0

    def __call__(self, t):
        self.P(t)

    def srd(self, d, b, nbytes, off=0):
        P = self.P
        if off:
            P(f"s_add_u32 {s(d)}, {s(b)}, {off}")
            P(f"s_addc_u32 {s(d+1)}, {s(b+1)}, 0")
        else:
            P(f"s_mov_b32 {s(d)}, {s(b)}")
            P(f"s_mov_b32 {s(d+1)}, {s(b+1)}")
        P(f"s_mov_b32 {s(d+2)}, {nbytes}")
        P(f"s_mov_b32 {s(d+3)}, 0x00020000")

    def stamp(self, i, real=False):
        if AMP and i in AMP[:2]:
            self.P(f"s_memrealtime s[{94 + 2 * AMP.index(i)}:{95 + 2 * AMP.index(i)}]")
            self.P("s_waitcnt lgkmcnt(0)")
        if not STAMP:
            return
        self.P(f"{'s_memrealtime' if real else 's_memtime'} s[100:101]")
        self.P("s_waitcnt lgkmcnt(0)")
        self.P(f"v_writelane_b32 v31, s100, {i}")

    def wvm(self, *tags, g="XY"):
        assert self.vm.has(*tags), tags
        self.P(f"s_waitcnt vmcnt({self.vm.n(*tags, g=g)})")

    def wlg(self, *tags, g="XY"):
        assert self.lg.has(*tags), tags
        self.P(f"s_waitcnt lgkmcnt({self.lg.n(*tags, g=g)})")

    def label(self, base):
        self.nl += 1
        return f"{base}{self.nl}"

    def poll(self, vaddr, soff, vtmp, hook=None):
        P = self.P
        L = self.label("poll")
        P(f"s_mov_b32 {s(sCNT)}, {SPIN}")
        if hook:
            P(f"buffer_load_dword {v(vtmp)}, {v(vaddr)}, {s(WS_, 4)}, {soff} offen sc1")
            P("s_waitcnt vmcnt(0)")
            hook()
            P(f"v_cmp_ne_u32 vcc, {s(sTAG)}, {v(vtmp)}")
            P(f"s_cbranch_vccz {L}_ok")
        P(f"{L}:")
        P(f"buffer_load_dword {v(vtmp)}, {v(vaddr)}, {s(WS_, 4)}, {soff} offen sc1")
        P("s_waitcnt vmcnt(0)")
        P(f"v_cmp_ne_u32 vcc, {s(sTAG)}, {v(vtmp)}")
        P(f"s_cbranch_vccz {L}_ok")
        P(f"s_sleep {SLP}")
        P(f"s_sub_u32 {s(sCNT)}, {s(sCNT)}, 1")
        P(f"s_cbranch_scc0 {L}")
        P(f"{L}_ok:")
        self.vm.clear()

    def poll_issue(self):
        self.P(f"buffer_load_dword {v(vPR)}, {v(vPA)}, {s(WS_, 4)}, 0 offen {pf()}")
        self.vm.add("poll")

    def poll_check(self, slow=None):
        P = self.P
        L = self.label("poll")
        self.wvm("poll")
        P(f"v_cmp_ne_u32 vcc, {s(sTAG)}, {v(vPR)}")
        P(f"s_cbranch_vccz {L}_ok")
        save = {k: list(q) for k, q in self.vm.q.items()}
        if slow:
            P("s_waitcnt vmcnt(0)")
            slow()
        P(f"s_mov_b32 {s(sCNT)}, {SPIN}")
        P(f"{L}:")
        P(f"buffer_load_dword {v(vPR)}, {v(vPA)}, {s(WS_, 4)}, 0 offen {pf()}")
        P("s_waitcnt vmcnt(0)")
        P(f"v_cmp_ne_u32 vcc, {s(sTAG)}, {v(vPR)}")
        P(f"s_cbranch_vccz {L}_ok")
        P(f"s_sleep {SLP}")
        P(f"s_sub_u32 {s(sCNT)}, {s(sCNT)}, 1")
        P(f"s_cbranch_scc0 {L}")
        P(f"{L}_ok:")
        self.vm.q = save

    def signal(self, soff, g="XY", val=None):
        P = self.P
        if FW >= 64:
            for j in range(4):
                P(f"v_mov_b32 {v(vSG + j)}, {s(sTAG if val is None else val)}")
            P(f"s_mov_b64 exec, {hex((1 << (FW // 16)) - 1)}")
            P(f"buffer_store_dwordx4 {v(vSG, 4)}, {v(vLA)}, {s(WS_, 4)}, {soff} offen sc1")
        else:
            P(f"v_mov_b32 {v(vSG)}, {s(sTAG if val is None else val)}")
            P("s_mov_b64 exec, 1")
            P(f"buffer_store_dword {v(vSG)}, {v(vLA)}, {s(WS_, 4)}, {soff} offen sc1")
        P("s_mov_b64 exec, -1")
        self.vm.add("flag", 1, g)

    def swbar(self, word, count):
        self.arrive(word)
        self.check(word, count)

    def arrive(self, word):
        P = self.P
        P(f"v_mov_b32 {v(vB + 5)}, {L_SY + 4 * word}")
        P(f"v_mov_b32 {v(vB + 6)}, 1")
        P("s_mov_b64 exec, 1")
        P(f"ds_add_u32 {v(vB + 5)}, {v(vB + 6)}")
        P("s_mov_b64 exec, -1")

    def check(self, word, count):
        P = self.P
        L = self.label("swb")
        P(f"v_mov_b32 {v(vB + 5)}, {L_SY + 4 * word}")
        P(f"s_mov_b32 {s(sCNT)}, {SPIN * 64}")
        P(f"{L}:")
        P(f"ds_read_b32 {v(vB + 6)}, {v(vB + 5)}")
        P("s_waitcnt lgkmcnt(0)")
        P(f"v_cmp_gt_u32 vcc, {count}, {v(vB + 6)}")
        P(f"s_cbranch_vccz {L}_ok")
        P(f"s_sub_u32 {s(sCNT)}, {s(sCNT)}, 1")
        P(f"s_cbranch_scc0 {L}")
        P(f"{L}_ok:")
        self.lg.clear()


def stf(k):
    if k + "plain" in OPT:
        return ""
    if k + "sc01" in OPT:
        return "sc0 sc1"
    if k + "nt" in OPT:
        return "nt"
    return "sc1"


def pf():
    if "pnt" in OPT:
        return "sc1 nt"
    if "p01" in OPT:
        return "sc0 sc1"
    if "p01nt" in OPT:
        return "sc0 sc1 nt"
    return "sc1"


def fma_const(dst, src, c, addend):
    if c == 0:
        return f"v_mov_b32 {v(dst)}, {v(addend)}"
    if c == 1:
        return f"v_add_f32 {v(dst)}, {v(src)}, {v(addend)}"
    return f"v_fmamk_f32 {v(dst)}, {v(src)}, {f32(float(c))}, {v(addend)}"


def p2_consts(t):
    o = []
    af, bs, fb, fn, lm = t, t + 1, t + 2, t + 3, t + 4
    cs, sn = t + 8, t + 12
    o.append(f"s_lshl_b32 {s(sT0)}, {s(sW)}, 4")
    o.append(f"v_add_u32 {v(af)}, {s(sT0)}, {v(vN)}")
    o.append(f"v_cvt_f32_u32 {v(af)}, {v(af)}")
    o.append(f"v_mul_f32 {v(af)}, {f32(1.0 / 64)}, {v(af)}")
    o.append(f"v_lshlrev_b32 {v(fb)}, 2, {v(vG4)}")
    o.append(f"v_cvt_f32_u32 {v(fb)}, {v(fb)}")
    o.append(f"v_cvt_f32_u32 {v(fn)}, {v(vN)}")
    o.append(f"v_mul_f32 {v(bs)}, {v(af)}, {v(fb)}")

    def six(dst, step, base, k0):
        for j in range(4):
            o.append(fma_const(sn + j, step, k0 + j, base))
        for j in range(4):
            o.append(f"v_cos_f32 {v(cs + j)}, {v(sn + j)}")
            o.append(f"v_sin_f32 {v(sn + j)}, {v(sn + j)}")
        for j in range(2):
            o.append(f"v_cvt_pk_bf16_f32 {v(dst + 2 + j)}, {v(cs + 2 * j)}, {v(cs + 2 * j + 1)}")
            o.append(f"v_cvt_pk_bf16_f32 {v(dst + 4 + j)}, {v(sn + 2 * j)}, {v(sn + 2 * j + 1)}")
        for j in range(2):
            o.append(f"v_xor_b32 {v(dst + j)}, 0x80008000, {v(dst + 4 + j)}")

    for ks in range(4):
        six(C64 + 6 * ks, af, bs, 16 * ks)
    o.append(f"v_mul_f32 {v(af)}, {f32(1.0 / 32)}, {v(af)}")
    o.append(f"v_mul_f32 {v(bs)}, {f32(1.0 / 32)}, {v(bs)}")
    for i in range(8):
        o.append(fma_const(T1S + i, af, 16 * (i >> 2) + (i & 3), bs))
    for i in range(8):
        o.append(f"v_cos_f32 {v(T1C + i)}, {v(T1S + i)}")
        o.append(f"v_sin_f32 {v(T1S + i)}, {v(T1S + i)}")
    o.append(f"v_mul_f32 {v(af)}, {f32(1.0 / 32)}, {v(fn)}")
    o.append(f"v_mul_f32 {v(bs)}, {v(af)}, {v(fb)}")
    six(E32, af, bs, 0)
    o.append(f"v_and_b32 {v(lm)}, 1, {v(vN)}")
    o.append(f"v_mul_u32_u24 {v(lm)}, 0x8000, {v(lm)}")
    o.append(f"v_lshl_or_b32 {v(lm)}, {v(lm)}, 16, {v(lm)}")
    for j in range(6):
        o.append(f"v_xor_b32 {v(E32 + 6 + j)}, {v(lm)}, {v(E32 + j)}")
    for j in range(12):
        o.append(f"v_xor_b32 {v(E32 + 12 + j)}, 0x80000000, {v(E32 + j)}")
    o.append(f"v_cvt_f32_u32 {v(lm)}, {s(sT0)}")
    o.append(f"v_add_f32 {v(fb)}, {v(lm)}, {v(fb)}")
    for nt in range(2):
        if nt:
            o.append(f"v_add_f32 {v(fn)}, {f32(16.0)}, {v(fn)}")
        o.append(f"v_mul_f32 {v(af)}, {f32(1.0 / 2048)}, {v(fn)}")
        o.append(f"v_mul_f32 {v(bs)}, {v(af)}, {v(fb)}")
        for r in range(4):
            o.append(fma_const(T2S + 4 * nt + r, af, r, bs))
    for i in range(8):
        o.append(f"v_cos_f32 {v(T2C + i)}, {v(T2S + i)}")
        o.append(f"v_sin_f32 {v(T2S + i)}, {v(T2S + i)}")
    return o


def m_frags(t):
    mg = []
    df, bs, cs, sn = t, t + 2, t + 4, t + 8
    mg.append(f"s_lshl_b32 {s(sT0)}, {s(sJM)}, 6")
    mg.append(f"v_add_u32 {v(df)}, {s(sT0)}, {v(vM)}")
    mg.append(f"v_add_u32 {v(df + 1)}, 32, {v(df)}")
    mg.append(f"s_mul_i32 {s(sT0)}, {s(sRG)}, 56")
    mg.append(f"v_lshl_add_u32 {v(cs)}, {v(vH)}, 2, {s(sT0)}")
    mg.append(f"v_cvt_f32_u32 {v(cs)}, {v(cs)}")
    for dt in range(2):
        mg.append(f"v_cvt_f32_u32 {v(df + dt)}, {v(df + dt)}")
        mg.append(f"v_mul_f32 {v(df + dt)}, {f32(1.0 / 448)}, {v(df + dt)}")
        mg.append(f"v_mul_f32 {v(bs + dt)}, {v(df + dt)}, {v(cs)}")
    for i in range(8):
        for dt in range(2):
            for j in range(4):
                mg.append(fma_const(sn + j, df + dt, 8 * i + j, bs + dt))
            for j in range(4):
                mg.append(f"v_cos_f32 {v(cs + j)}, {v(sn + j)}")
                mg.append(f"v_sin_f32 {v(sn + j)}, {v(sn + j)}")
            for j in range(4):
                mg.append(f"v_cvt_pk_bf16_f32 {v(MF + (i * 2 + dt) * 4 + j)}, {v(cs + j)}, -{v(sn + j)}")
    return mg


def row_of_p(P, dst, p, tmp):
    P(f"v_bfe_u32 {v(dst)}, {v(p)}, 2, 4")
    P(f"v_bfe_u32 {v(tmp)}, {v(p)}, 8, 1")
    P(f"v_lshl_add_u32 {v(dst)}, {v(tmp)}, 4, {v(dst)}")
    P(f"v_and_b32 {v(tmp)}, 3, {v(p)}")
    P(f"v_lshl_add_u32 {v(dst)}, {v(tmp)}, 5, {v(dst)}")
    P(f"v_and_b32 {v(tmp)}, 0xc0, {v(p)}")
    P(f"v_lshl_add_u32 {v(dst)}, {v(tmp)}, 1, {v(dst)}")
    P(f"v_and_b32 {v(tmp)}, 0x600, {v(p)}")
    P(f"v_add_u32 {v(dst)}, {v(dst)}, {v(tmp)}")
    P(f"v_mul_u32_u24 {v(dst)}, 896, {v(dst)}")


class Filler:
    def __init__(self, G):
        self.G, self.q = G, []

    def add(self, items):
        self.q += items

    def emit(self, n):
        while n > 0 and self.q:
            it = self.q.pop(0)
            if callable(it):
                it()
            else:
                self.G(it)
            n -= 1

    def drain(self):
        self.emit(1 << 30)


def xslot(n):
    return 0 if n == 6 else 32768 + 16384 * n


def wchunk(c):
    return 16384 + 8192 * c


LA = 3
LAG = 6
LATE = {4: [[3, 4], [5, 6]], 5: [[2, 3], [4, 5, 6]], 6: [[1, 2], [3, 4], [5, 6]], 7: [[0, 1], [2, 3, 4], [5, 6]]}
YPRIO = 1
XBAR = 0
W2P = 0
F1_T = 16
XC1 = 150
YM1 = 120
YM2 = 200
NX = 1
ASIG = 1
VSIG = 1
VCHK = 9
XPK = 3
YEARLY = 2
YW2 = 16
SLP = 4
SGS = 128
TOUCH = 21


def build():
    G = Gen()
    P = G
    vm, lg = G.vm, G.lg
    K = NAME + "_kernel"
    G.P.raw(f".globl {K}")
    G.P.raw(".p2align 8")
    G.P.raw(f".type {K},@function")
    G.P.raw(f"{K}:")
    P("s_cmp_ge_u32 s2, 256")
    P("s_cbranch_scc1 L_end")
    if STAMP:
        P("v_mov_b32 v31, 0")
        G.stamp(0, True)
        G.stamp(1)
    P("s_load_dwordx16 s[4:19], s[0:1], 0")
    P("s_load_dwordx2 s[26:27], s[0:1], 64")
    P("s_load_dwordx2 s[24:25], s[0:1], 80")
    if "nocp" not in OPT:
        P("s_cmp_lt_u32 s2, 224")
        P("s_cbranch_scc1 L_nocp")
        P(f"s_getpc_b64 {s(WR_, 2)}")
        P("L_pc:")
        P(f"s_mov_b32 {s(WR_ + 2)}, L_end-L_pc")
        P(f"s_mov_b32 {s(WR_ + 3)}, 0x00020000")
        P(f"v_lshlrev_b32 {v(vT)}, 7, v0")
        P(f"buffer_load_dword {v(vEP)}, {v(vT)}, {s(WR_, 4)}, 0 offen")
        P("L_nocp:")
    P(f"v_lshrrev_b32 {v(vT)}, 6, v0")
    P(f"v_and_b32 {v(vL)}, 63, v0")
    P(f"v_readfirstlane_b32 {s(sW)}, {v(vT)}")
    P(f"v_and_b32 {v(vM)}, 31, v0")
    P(f"v_lshrrev_b32 {v(vH)}, 5, {v(vL)}")
    P(f"v_and_b32 {v(vN)}, 15, v0")
    P(f"v_lshrrev_b32 {v(vG4)}, 4, {v(vL)}")
    P(f"v_lshlrev_b32 {v(vLA)}, 4, {v(vL)}")
    P(f"s_and_b32 {s(sXCD)}, s2, 7")
    P(f"s_lshr_b32 {s(sT0)}, s2, 3")
    P(f"s_mul_i32 {s(sJ7)}, {s(sT0)}, 37")
    P(f"s_lshr_b32 {s(sJ7)}, {s(sJ7)}, 8")
    P(f"s_mul_i32 {s(sJM)}, {s(sJ7)}, 7")
    P(f"s_sub_u32 {s(sJM)}, {s(sT0)}, {s(sJM)}")
    P(f"s_lshl_b32 {s(sRB64)}, {s(sXCD)}, 2")
    P(f"s_add_u32 {s(sRB64)}, {s(sRB64)}, {s(sJ7)}")
    P(f"s_lshr_b32 {s(sRB)}, {s(sXCD)}, 1")
    P(f"s_lshl_b32 {s(sRB)}, {s(sRB)}, 2")
    P(f"s_add_u32 {s(sRB)}, {s(sRB)}, {s(sJ7)}")
    P(f"s_and_b32 {s(sQ)}, {s(sXCD)}, 1")
    P(f"s_mul_i32 {s(sQ)}, {s(sQ)}, 7")
    P(f"s_add_u32 {s(sQ)}, {s(sQ)}, {s(sJM)}")
    P(f"s_and_b32 {s(sRG)}, {s(sW)}, 3")
    P(f"s_lshr_b32 {s(sCH)}, {s(sW)}, 2")
    P(f"s_lshl_b32 {s(sSG)}, {s(sRB)}, 2")
    P(f"s_add_u32 {s(sSG)}, {s(sSG)}, {s(sRG)}")
    P(f"s_lshl_b32 {s(sLX)}, {s(sRG)}, 12")
    P(f"s_lshl_b32 {s(sLA)}, {s(sRG)}, 11")
    P(f"s_xor_b32 {s(sT0)}, {s(sCH)}, 1")
    P(f"s_lshl_b32 {s(sLW)}, {s(sT0)}, 16")
    P(f"s_add_u32 {s(sLW)}, {s(sLW)}, {s(sLA)}")
    t0, t1, t2 = TMP, TMP + 1, TMP + 2
    XD4 = 176
    P(f"v_lshrrev_b32 {v(t0)}, 3, {v(vL)}")
    P(f"v_mul_u32_u24 {v(t2)}, 896, {v(t0)}")
    P(f"v_lshrrev_b32 {v(t1)}, 2, {v(vL)}")
    P(f"v_and_b32 {v(t1)}, 4, {v(t1)}")
    P(f"v_xor_b32 {v(t1)}, {v(t1)}, {v(vL)}")
    P(f"v_and_b32 {v(t1)}, 7, {v(t1)}")
    P(f"v_lshlrev_b32 {v(t1)}, 4, {v(t1)}")
    P(f"v_add_u32 {v(vWD)}, {v(t1)}, {v(t2)}")
    P(f"s_cmp_ge_u32 {s(sJ7)}, 4")
    P("s_cbranch_scc1 L_side")
    P(f"s_cmp_eq_u32 {s(sCH)}, 0")
    P("s_cbranch_scc1 L_x0")

    def stage(n):
        o = []

        def dx(n, r):
            P(f"s_add_u32 m0, {s(sLX)}, {xslot(n) + r * 1024}")
            P(f"buffer_load_dwordx4 {v(XD4 + r)}, {s(X_, 4)}, {s(sXO)} offen lds")
            if r == 3:
                P(f"s_add_u32 {s(sXO)}, {s(sXO)}, 128")
            vm.add(("st", n))

        def dw(n, base, so, i):
            P(f"s_add_u32 m0, {s(sLA)}, {base + i * 1024}")
            P(f"buffer_load_dwordx4 {v(vAD)}, {s(W1_, 4)}, {s(so)} offen lds")
            P(f"s_add_u32 {s(so)}, {s(so)}, {28672 if i == 0 else 7 * 28672}")
            vm.add(("st", n))

        if n < 7:
            o += [lambda r=r: dx(n, r) for r in range(4)]
        else:
            for c in (2 * (n - 7), 2 * (n - 7) + 1):
                o += [lambda i=i, c=c: dw(n, wchunk(c), sAO if c < 7 else sBO, i) for i in range(2)]
        return o

    NSTG = 14

    def run(items):
        for it in items:
            if callable(it):
                it()
            else:
                P(it)

    P(f"v_lshl_add_u32 {v(vAD)}, {v(t2)}, 2, {v(t1)}")
    P(f"v_and_b32 {v(t1)}, 4, {v(t0)}")
    P(f"v_xor_b32 {v(t1)}, {v(t1)}, {v(vL)}")
    P(f"v_and_b32 {v(t1)}, 7, {v(t1)}")
    P(f"v_lshl_add_u32 {v(XD4)}, {v(t1)}, 4, {v(t2)}")
    for r in range(1, 4):
        P(f"v_xor_b32 {v(XD4 + r)}, {r * 16}, {v(XD4)}")
        P(f"v_add_u32 {v(XD4 + r)}, {r * 28672}, {v(XD4 + r)}")
    P(f"s_and_b32 {s(sT0)}, {s(sSG)}, 1")
    P(f"s_lshl_b32 {s(sXO)}, {s(sT0)}, 3")
    P(f"s_and_b32 {s(sT0)}, {s(sSG)}, 8")
    P(f"s_lshl_b32 {s(sT0)}, {s(sT0)}, 1")
    P(f"s_add_u32 {s(sXO)}, {s(sXO)}, {s(sT0)}")
    P(f"s_and_b32 {s(sT0)}, {s(sSG)}, 6")
    P(f"s_lshl_b32 {s(sT0)}, {s(sT0)}, 6")
    P(f"s_add_u32 {s(sXO)}, {s(sXO)}, {s(sT0)}")
    P(f"s_and_b32 {s(sT0)}, {s(sSG)}, 48")
    P(f"s_lshl_b32 {s(sT0)}, {s(sT0)}, 5")
    P(f"s_add_u32 {s(sXO)}, {s(sXO)}, {s(sT0)}")
    P(f"s_mul_i32 {s(sXO)}, {s(sXO)}, 896")
    P(f"s_lshl_b32 {s(sAO)}, {s(sQ)}, 8")
    P(f"s_mul_i32 {s(sT0)}, {s(sRG)}, {2 * 28672}")
    P(f"s_add_u32 {s(sAO)}, {s(sAO)}, {s(sT0)}")
    P(f"s_add_u32 {s(sBO)}, {s(sAO)}, 128")
    P(f"s_mov_b32 {s(X_ + 2)}, {S_ * D_ * 2}")
    P(f"s_mov_b32 {s(X_ + 3)}, 0x00020000")
    P(f"s_mov_b32 {s(W1_ + 2)}, {D_ * F_ * 2}")
    P(f"s_mov_b32 {s(W1_ + 3)}, 0x00020000")
    P("s_waitcnt lgkmcnt(0)")
    G.stamp(2)
    P(f"s_mov_b64 {s(X_, 2)}, s[4:5]")
    P(f"s_mov_b64 {s(W1_, 2)}, s[12:13]")
    for n in range(LA):
        run(stage(n))
    P("s_branch L_y1")
    y_vm = {k: list(q) for k, q in vm.q.items()}

    def issue_w2(st, half, lw=sLW, wo=sWO, tag="w2"):
        P(f"s_add_u32 m0, {s(lw)}, {(st & 7) * 8192 + half * 1024}")
        P(f"buffer_load_dwordx4 {v(vWD)}, {s(W2_, 4)}, {s(wo)} offen lds")
        if half == 0 or st & 1 == 0:
            P(f"s_add_u32 {s(wo)}, {s(wo)}, {8 * 896}")
        else:
            P(f"s_add_u32 {s(wo)}, {s(wo)}, {s(sI1 if st & 3 == 1 else sI3)}")
        vm.add((tag, st))

    BA, BO = TMP + 16, TMP + 20

    def ptr_setup():
        G.srd(B1_, 14, F_ * 2)
        P(f"v_lshlrev_b32 {v(vT)}, 1, {v(vL)}")
        P(f"s_lshl_b32 {s(sT0)}, {s(sQ)}, 8")
        P(f"s_lshl_b32 {s(sT1)}, {s(sCH)}, 7")
        P(f"s_add_u32 {s(sT0)}, {s(sT0)}, {s(sT1)}")
        P(f"buffer_load_ushort {v(BA)}, {v(vT)}, {s(B1_, 4)}, {s(sT0)} offen")
        vm.add("bias")
        G.srd(WS_, 24, WS_END)
        P("s_mov_b64 exec, 1")
        P(f"buffer_load_dword {v(vEP)}, {v(vLA)}, {s(WS_, 4)}, 0 offen")
        P("s_mov_b64 exec, -1")
        vm.add("ep")
        G.srd(W2_, 16, F_ * D_ * 2)
        G.srd(OUT_, 26, S_ * D_ * 2)
        G.srd(V_, 24, 225 * 8192, WS_V)

    def w2_setup():
        o = []
        o.append(f"s_mul_i32 {s(sCNT)}, {s(sRG)}, 14")
        o.append(f"s_lshr_b32 {s(sT1)}, {s(sCNT)}, 2")
        o.append(f"s_lshl_b32 {s(sT1)}, {s(sT1)}, 7")
        o.append(f"s_and_b32 {s(sCNT)}, {s(sCNT)}, 3")
        o.append(f"s_lshl_b32 {s(sT2)}, {s(sCNT)}, 4")
        o.append(f"s_add_u32 {s(sT1)}, {s(sT1)}, {s(sT2)}")
        o.append(f"s_xor_b32 {s(sT2)}, {s(sCH)}, 1")
        o.append(f"s_lshl_b32 {s(sT2)}, {s(sT2)}, 6")
        o.append(f"s_add_u32 {s(sT1)}, {s(sT1)}, {s(sT2)}")
        o.append(f"s_mul_i32 {s(sWO)}, {s(sT1)}, 896")
        o.append(f"s_lshl_b32 {s(sT1)}, {s(sJM)}, 7")
        o.append(f"s_add_u32 {s(sWO)}, {s(sWO)}, {s(sT1)}")
        o.append(f"s_mul_i32 {s(sI1)}, {s(sCNT)}, {32 * 896}")
        o.append(f"s_sub_u32 {s(sI3)}, {72 * 896}, {s(sI1)}")
        o.append(f"s_add_u32 {s(sI1)}, {s(sI1)}, {8 * 896}")
        return o

    def rd_setup():
        P(f"v_bfe_u32 {v(t0)}, {v(vL)}, 2, 2")
        P(f"v_lshlrev_b32 {v(t1)}, 7, {v(t0)}")
        P(f"v_and_b32 {v(t2)}, 2, {v(t0)}")
        P(f"v_lshl_add_u32 {v(t1)}, {v(t2)}, 5, {v(t1)}")
        P(f"v_and_b32 {v(t2)}, 16, {v(vL)}")
        P(f"v_lshl_add_u32 {v(t1)}, {v(t2)}, 1, {v(t1)}")
        P(f"v_and_b32 {v(t0)}, 3, {v(vL)}")
        P(f"v_lshl_add_u32 {v(t1)}, {v(t0)}, 3, {v(t1)}")
        P(f"v_lshl_add_u32 {v(vTA)}, {v(vH)}, 10, {v(t1)}")
        P(f"s_mul_i32 {s(sT0)}, {s(sCH)}, {73728 - 16384}")
        P(f"s_add_u32 {s(sT0)}, {s(sT0)}, 16384")
        P(f"v_add_u32 {v(vTA)}, {s(sT0)}, {v(vTA)}")
        P(f"v_xor_b32 {v(vTA + 1)}, 64, {v(vTA)}")
        P(f"v_lshl_add_u32 {v(vTW)}, {v(vH)}, 9, {v(t1)}")
        P(f"v_add_u32 {v(vTW)}, {s(sLW)}, {v(vTW)}")
        P(f"v_xor_b32 {v(vTW + 1)}, 64, {v(vTW)}")
        P(f"v_bfe_u32 {v(t1)}, {v(vL)}, 2, 3")
        P(f"v_and_b32 {v(t2)}, 4, {v(t1)}")
        P(f"v_xor_b32 {v(t2)}, {v(t2)}, {v(t0)}")
        P(f"v_xor_b32 {v(t2)}, {v(t2)}, {v(vH)}")
        P(f"v_lshlrev_b32 {v(t2)}, 4, {v(t2)}")
        P(f"v_lshl_add_u32 {v(t2)}, {v(t1)}, 7, {v(t2)}")
        P(f"v_lshl_add_u32 {v(t2)}, {v(t0)}, 10, {v(t2)}")
        P(f"v_add_u32 {v(vXR)}, {s(sLX)}, {v(t2)}")
        for j in range(1, 4):
            P(f"v_xor_b32 {v(vXR + j)}, {32 * j}, {v(vXR)}")

    def late_setup():
        o = []
        for j in range(1, 4):
            o.append(f"v_mov_b32 {v(BA + j)}, 0")
            o.append(f"v_mov_b32 {v(BO + j)}, 0")
            o.append(f"v_mov_b32 {v(BO + 4 + j)}, 0")
        o.append(f"v_mul_u32_u24 {v(BO + 4)}, 0x3f80, {v(vH)}")
        o.append(f"v_sub_u32 {v(BO)}, 0x3f80, {v(BO + 4)}")
        o.append(f"s_mov_b32 {s(sC0)}, {f32(-LOG2E)}")
        o.append(f"s_mov_b32 {s(sC0 + 1)}, {f32(-LOG2E)}")
        o.append(f"s_mul_i32 {s(sA0)}, {s(sSG)}, {SGS}")
        o.append(f"s_mul_i32 {s(sT1)}, {s(sCH)}, 56")
        o.append(f"s_add_u32 {s(sA0)}, {s(sA0)}, {s(sT1)}")
        o.append(f"s_lshl_b32 {s(sT1)}, {s(sQ)}, 2")
        o.append(f"s_add_u32 {s(sA0)}, {s(sA0)}, {s(sT1)}")
        o.append(f"s_lshl_b32 {s(sA0)}, {s(sA0)}, 10")
        o.append(f"s_add_u32 {s(sA0)}, {s(sA0)}, {WS_ACT}")
        o.append(f"s_lshl_b32 {s(sFL)}, {s(sSG)}, 1")
        o.append(f"s_add_u32 {s(sFL)}, {s(sFL)}, {s(sCH)}")
        o.append(f"s_lshl_b32 {s(sFL)}, {s(sFL)}, 4")
        o.append(f"s_add_u32 {s(sFL)}, {s(sFL)}, {s(sQ)}")
        o.append(f"s_mul_i32 {s(sFL)}, {s(sFL)}, {FS}")
        o.append(f"s_add_u32 {s(sFL)}, {s(sFL)}, {WS_F3}")
        return o + w2_setup()

    def tag_ready():
        G.wvm("ep")
        P(f"v_readfirstlane_b32 {s(sTAG)}, {v(vEP)}")
        P(f"s_mul_i32 {s(sTAG)}, {s(sTAG)}, 1664525")
        P(f"s_add_u32 {s(sTAG)}, {s(sTAG)}, 1013904223")

    def xwin(n):
        if n == 2:
            for j in range(4):
                P(f"v_add_u32 {v(vXR + j)}, 0x10000, {v(vXR + j)}")
        if n == 6:
            for j in range(4):
                P(f"v_subrev_u32 {v(vXR + j)}, 0x10000, {v(vXR + j)}")

    def bias_mfma(init):
        for dt in range(2):
            d = v(ACC + 16 * dt, 16)
            P(f"v_mfma_f32_32x32x16_bf16 {d}, {v(BA, 4)}, {v(BO + 4 * dt, 4)}, {'0' if init else d}")

    def mish(fs, pk=True):
        h = ACC + 8 * fs
        u = TMP + (fs & 1) * 16
        dn = u + 8
        o = []
        if pk:
            o += [f"v_pk_fma_f32 {v(u + 2 * i, 2)}, {v(h + 2 * i, 2)}, {s(sC0, 2)}, 1.0 op_sel_hi:[1,1,0]" for i in range(4)]
            o += [f"v_exp_f32 {v(u + i)}, {v(u + i)}" for i in range(8)]
            o += [f"v_pk_add_f32 {v(u + 2 * i, 2)}, {v(u + 2 * i, 2)}, 1.0 op_sel_hi:[1,0]" for i in range(4)]
            o += [f"v_pk_fma_f32 {v(dn + 2 * i, 2)}, {v(u + 2 * i, 2)}, {v(u + 2 * i, 2)}, 1.0 op_sel_hi:[1,1,0]" for i in range(4)]
            o += [f"v_rcp_f32 {v(dn + i)}, {v(dn + i)}" for i in range(8)]
            o += [f"v_pk_mul_f32 {v(u + 2 * i, 2)}, {v(u + 2 * i, 2)}, {v(dn + 2 * i, 2)} clamp" for i in range(4)]
            o += [f"v_pk_mul_f32 {v(u + 2 * i, 2)}, {v(u + 2 * i, 2)}, {v(h + 2 * i, 2)}" for i in range(4)]
        else:
            o += [f"v_fma_f32 {v(u + i)}, {v(h + i)}, {s(sC0)}, 1.0" for i in range(8)]
            o += [f"v_exp_f32 {v(u + i)}, {v(u + i)}" for i in range(8)]
            o += [f"v_add_f32 {v(u + i)}, 1.0, {v(u + i)}" for i in range(8)]
            o += [f"v_fma_f32 {v(dn + i)}, {v(u + i)}, {v(u + i)}, 1.0" for i in range(8)]
            o += [f"v_rcp_f32 {v(dn + i)}, {v(dn + i)}" for i in range(8)]
            o += [f"v_mul_f32 {v(u + i)}, {v(u + i)}, {v(dn + i)} clamp" for i in range(8)]
            o += [f"v_mul_f32 {v(u + i)}, {v(u + i)}, {v(h + i)}" for i in range(8)]
        o += [f"v_cvt_pk_bf16_f32 {v(h + i)}, {v(u + 2 * i)}, {v(u + 2 * i + 1)}" for i in range(4)]

        def st():
            if "tinyact" in OPT:
                P("s_mov_b64 exec, 0xff")
            P(f"buffer_store_dwordx4 {v(h, 4)}, {v(vLA)}, {s(WS_, 4)}, {s(sA0)} offen offset:{fs * 1024} sc1")
            if "tinyact" in OPT:
                P("s_mov_b64 exec, -1")
            vm.add("act")

        o.append(st)
        return o

    def f3_addr():
        P(f"v_and_b32 {v(vPA)}, 3, {v(vL)}")
        P(f"v_and_b32 {v(vPR)}, 4, {v(vL)}")
        P(f"v_lshl_add_u32 {v(vPA)}, {v(vPR)}, 3, {v(vPA)}")
        P(f"s_xor_b32 {s(sCNT)}, {s(sCH)}, 1")
        P(f"s_mul_i32 {s(sT1)}, {s(sRG)}, 7")
        P(f"s_lshr_b32 {s(sT1)}, {s(sT1)}, 1")
        P(f"s_lshl_b32 {s(sT0)}, {s(sRB64)}, 6")
        P(f"s_add_u32 {s(sT0)}, {s(sT0)}, {s(sT1)}")
        P(f"s_lshl_b32 {s(sT1)}, {s(sCNT)}, 4")
        P(f"s_add_u32 {s(sT0)}, {s(sT0)}, {s(sT1)}")
        P(f"s_add_u32 {s(sT0)}, {s(sT0)}, {WS_F3 // FS}")
        P(f"v_add_u32 {v(vPA)}, {s(sT0)}, {v(vPA)}")
        P(f"v_mul_u32_u24 {v(vPA)}, {FS}, {v(vPA)}")

    def f1_addr():
        P(f"s_cmp_eq_u32 {s(sK)}, 224")
        P(f"s_cselect_b32 {s(sT0)}, 0, {s(sK)}")
        P(f"s_lshr_b32 {s(sT0)}, {s(sT0)}, 4")
        P(f"s_lshl_b32 {s(sT0)}, {s(sT0)}, 2")
        P(f"s_add_u32 {s(sT0)}, {s(sT0)}, {s(sW)}")
        P(f"s_lshl_b32 {s(sT0)}, {s(sT0)}, 4")
        P(f"s_add_u32 {s(sT0)}, {s(sT0)}, {WS_F1 // FS}")
        P(f"v_add_u32 {v(vPA)}, {s(sT0)}, {v(vN)}")
        P(f"v_add_u32 {v(vPR)}, {WS_F2 // FS}, {v(vM)}")
        P(f"v_cmp_eq_u32 vcc, 1, {v(vH)}")
        P(f"v_cndmask_b32 {v(vPA)}, {v(vPA)}, {v(vPR)}, vcc")
        P(f"v_mul_u32_u24 {v(vPA)}, {FS}, {v(vPA)}")

    AC3, AR, WF, VF = 64, 0, 32, 48
    NST = 14
    FL = Filler(G)

    def act_base():
        P(f"s_xor_b32 {s(sT0)}, {s(sCH)}, 1")
        P(f"s_mul_i32 {s(sA0)}, {s(sRB64)}, {2 * SGS}")
        P(f"s_mul_i32 {s(sT1)}, {s(sRG)}, 14")
        P(f"s_add_u32 {s(sA0)}, {s(sA0)}, {s(sT1)}")
        P(f"s_mul_i32 {s(sT1)}, {s(sT0)}, 56")
        P(f"s_add_u32 {s(sA0)}, {s(sA0)}, {s(sT1)}")
        P(f"s_lshl_b32 {s(sA0)}, {s(sA0)}, 10")
        P(f"s_add_u32 {s(sA0)}, {s(sA0)}, {WS_ACT}")
        P(f"s_add_u32 {s(sA1)}, {s(sA0)}, {SGS * 1024}")

    def issue_act(st):
        sl = st % 4
        for nt, so in ((0, sA0), (1, sA1)):
            P(f"buffer_load_dwordx4 {a(AR + sl * 8 + 4 * nt, 4)}, {v(vLA)}, {s(WS_, 4)}, {s(so)} offen offset:{(st % 4) * 1024} sc1")
        if st % 4 == 3:
            P(f"s_add_u32 {s(sA0)}, {s(sA0)}, 4096")
            P(f"s_add_u32 {s(sA1)}, {s(sA1)}, 4096")
        vm.add(("act", st), 2)

    def w2r(st, o, n):
        return a(32 + 8 * (st - 2) + o, n) if 2 <= st < 6 else v(WF + (st & 1) * 8 + o, n)

    def rd_w2(st):
        off = (st & 7) * 8192
        for dt in range(2):
            P(f"ds_read_b64_tr_b16 {w2r(st, 4 * dt, 2)}, {v(vTW + dt)} offset:{off}")
            P(f"ds_read_b64_tr_b16 {w2r(st, 4 * dt + 2, 2)}, {v(vTW + dt)} offset:{off + 1024}")
        lg.add(("w2", st), 4)

    def w2_preload():
        for st in range(6):
            rd_w2(st)
        for st in range(6):
            G.wlg(("w2", st))
            issue_w2(st + 8, 0)
            issue_w2(st + 8, 1)
        lg.clear()

    def ffn_loop(after=None, nfill=5, lo=0, hi=NST):
        for st in range(lo, hi):
            if 6 <= st + 1 < NST:
                if st + 1 >= 8:
                    G.wvm(("w2", st + 1))
                rd_w2(st + 1)
            w = f" lgkmcnt({lg.n(('w2', st))})" if st >= 6 else ""
            P(f"s_waitcnt vmcnt({vm.n(('act', st))}){w}")
            if "ffnst" in OPT:
                G.stamp(33 + st)
            sl = st % 4
            for dt in range(2):
                for nt in range(2):
                    d = v(AC3 + (dt * 2 + nt) * 16, 16)
                    c = "0" if st == 0 else d
                    P(f"v_mfma_f32_32x32x16_bf16 {d}, {w2r(st, 4 * dt, 4)}, {a(AR + sl * 8 + 4 * nt, 4)}, {c}")
                    FL.emit(nfill)
            if st + DEPTH < NST:
                issue_act(st + DEPTH)
            if after:
                after(st)
        if hi == NST:
            FL.drain()

    def xreg(t):
        return a(4 * t, 4) if t < 16 else v(128 + 4 * (t - 16), 4)

    def rdx(n):
        xwin(n)
        for j in range(4):
            P(f"ds_read_b128 {xreg(4 * n + j)}, {v(vXR + j)} offset:{xslot(n) & 0xFFFF}")
            lg.add(("x", 4 * n + j))

    YW = 112

    def w1_rd(t, dt):
        b = YW + (t & 1) * 8 + 4 * dt
        P(f"ds_read_b64_tr_b16 {v(b, 2)}, {v(vTA + dt)} offset:{t * 2048}")
        P(f"ds_read_b64_tr_b16 {v(b + 2, 2)}, {v(vTA + dt)} offset:{t * 2048 + 512}")
        lg.add(("b", t, dt), 2)

    def w1_pass(before, after):
        w1_rd(0, 0)
        w1_rd(0, 1)
        for t in range(28):
            before(t)
            for dt in range(2):
                G.wlg(("b", t, dt))
                d = v(ACC + 16 * dt, 16)
                P(f"v_mfma_f32_32x32x16_bf16 {d}, {v(YW + (t & 1) * 8 + 4 * dt, 4)}, {xreg(t)}, {d}")
                if t + 1 < 28:
                    w1_rd(t + 1, dt)
                after(t, dt)

    P("L_x0:")
    vm.clear()
    lg.clear()
    kf, ph, d0, ta, c2 = TMP, TMP + 1, TMP + 2, TMP + 3, TMP + 28
    an = TMP + 4
    P(f"v_mov_b32 {v(an)}, 0")
    P(f"v_lshlrev_b32 {v(ta)}, 2, {v(vL)}")
    P(f"v_add_u32 {v(ta)}, {L_SY}, {v(ta)}")
    P(f"ds_write_b32 {v(ta)}, {v(an)}")
    P(f"s_lshl_b32 {s(sT0)}, {s(sQ)}, 4")
    P(f"v_add_u32 {v(kf)}, {s(sT0)}, {v(vN)}")
    P(f"v_and_b32 {v(ph)}, 16, {v(vL)}")
    P(f"v_lshl_add_u32 {v(d0)}, {v(kf)}, 5, {v(ph)}")
    P(f"v_cmp_eq_u32 {s(sM, 2)}, 16, {v(d0)}")
    P(f"v_cvt_f32_u32 {v(kf)}, {v(kf)}")
    P(f"v_mul_f32 {v(kf)}, {f32(1.0 / 448)}, {v(kf)}")
    P(f"v_cvt_f32_u32 {v(ph)}, {v(ph)}")
    P(f"v_mul_f32 {v(ph)}, {f32(1.0 / 64)}, {v(ph)}")
    P(f"v_cndmask_b32 {v(kf)}, {v(kf)}, 0.5, {s(sM, 2)}")
    P(f"v_cndmask_b32 {v(ph)}, {v(ph)}, 0, {s(sM, 2)}")
    P(f"s_lshl_b32 {s(sT0)}, {s(sW)}, 4")
    P(f"v_lshl_add_u32 {v(d0)}, {v(vH)}, 3, {s(sT0)}")
    P(f"v_cvt_f32_u32 {v(d0)}, {v(d0)}")
    P(f"v_fma_f32 {v(ph)}, {v(d0)}, {v(kf)}, {v(ph)}")
    P(f"v_cos_f32 {v(c2)}, {v(kf)}")
    P(f"v_add_u32 {v(vTT)}, {L_TAB}, {v(vLA)}")
    P(f"s_lshl_b32 {s(sT0)}, {s(sW)}, 10")
    P(f"v_add_u32 {v(ta)}, {s(sT0)}, {v(vTT)}")
    P(f"v_add_f32 {v(c2)}, {v(c2)}, {v(c2)}")
    for i in range(7):
        for j in (3, 4):
            P(fma_const(an + j, kf, 64 * i + j, ph))
        for j in (3, 4):
            P(f"v_cos_f32 {v(an + j)}, {v(an + j)}")
        for j in range(3):
            P(f"v_fma_f32 {v(an + 5 + j)}, {v(c2)}, {v(an + 4 + j)}, -{v(an + 3 + j)}")
            P(f"v_fma_f32 {v(an + 2 - j)}, {v(c2)}, {v(an + 3 - j)}, -{v(an + 4 - j)}")
        o = TMP + 12 if i & 1 else DACC
        for j in range(4):
            P(f"v_cvt_pk_bf16_f32 {v(o + j)}, {v(an + 2 * j)}, {v(an + 2 * j + 1)}")
        P(f"ds_write_b128 {v(ta)}, {v(o, 4)} offset:{i * 4096}")
    rd_setup()
    P("s_waitcnt lgkmcnt(0)")
    G.stamp(2)
    ptr_setup()
    run(late_setup())
    xa = vB
    P(f"v_mul_u32_u24 {v(xa)}, 144, {v(vN)}")
    P(f"s_mul_i32 {s(sT2)}, {s(sW)}, 2304")
    P(f"s_add_u32 {s(sT2)}, {s(sT2)}, {L_XT}")
    P(f"v_add_u32 {v(xa)}, {s(sT2)}, {v(xa)}")
    P(f"v_lshl_add_u32 {v(xa)}, {v(vH)}, 4, {v(xa)}")
    P(f"v_and_b32 {v(xa + 1)}, 16, {v(vL)}")
    P(f"v_lshl_add_u32 {v(xa)}, {v(xa + 1)}, 1, {v(xa)}")
    P(f"v_lshrrev_b32 {v(TMP)}, 3, {v(vL)}")
    P(f"v_and_b32 {v(TMP + 1)}, 7, {v(vL)}")
    P(f"v_lshlrev_b32 {v(TMP + 1)}, 4, {v(TMP + 1)}")
    P(f"v_mul_u32_u24 {v(xa + 1)}, 144, {v(TMP)}")
    P(f"v_add3_u32 {v(xa + 1)}, {v(xa + 1)}, {v(TMP + 1)}, {s(sT2)}")
    P(f"v_lshl_add_u32 {v(vT)}, {v(TMP)}, 13, {v(TMP + 1)}")
    P(f"s_mov_b32 {s(sK)}, s2")
    f1_addr()
    P(f"s_lshl_b32 {s(sXO)}, {s(sQ)}, 17")
    P(f"s_lshl_b32 {s(sT1)}, {s(sSG)}, 7")
    P(f"s_add_u32 {s(sXO)}, {s(sXO)}, {s(sT1)}")
    P(f"s_add_u32 {s(sXO)}, {s(sXO)}, {WS_XD}")
    P(f"s_add_u32 {s(sAO)}, {s(sXO)}, {8 * 8192}")
    P(f"s_lshl_b32 {s(sBO)}, {s(sQ)}, 6")
    P(f"s_add_u32 {s(sBO)}, {s(sBO)}, {s(sSG)}")
    P(f"s_mul_i32 {s(sBO)}, {s(sBO)}, {FS}")
    P(f"s_add_u32 {s(sBO)}, {s(sBO)}, {WS_F1}")
    G.stamp(3)
    TF = 176
    for n in range(7):
        P("s_barrier")
        if n == 0:
            G.stamp(5)
            for j in range(4):
                P(f"ds_read_b128 {v(TF + 4 * j, 4)}, {v(vTT)} offset:{j * 1024}")
                lg.add(("t", j))
        rdx(n)
        for j in range(4):
            t = 4 * n + j
            G.wlg(("x", t))
            c = "0" if t == 0 else v(DACC, 16)
            P(f"v_mfma_f32_32x32x16_bf16 {v(DACC, 16)}, {xreg(t)}, {v(TF + 4 * j, 4)}, {c}")
        if n < 6:
            for j in range(4):
                P(f"ds_read_b128 {v(TF + 4 * j, 4)}, {v(vTT)} offset:{(4 * n + 4 + j) * 1024}")
                lg.add(("t", 4 * n + 4 + j))
        if n == 4:
            tag_ready()
            bias_mfma(True)
    G.stamp(4)
    for i in range(8):
        P(f"v_cvt_pk_bf16_f32 {v(DACC + i)}, {v(DACC + 2 * i)}, {v(DACC + 2 * i + 1)}")
    for pr in range(2):
        o = DACC + 4 * pr
        P(f"v_permlane16_swap_b32 {v(o)}, {v(o + 2)}")
        P(f"v_permlane16_swap_b32 {v(o + 1)}, {v(o + 3)}")
        P(f"ds_write_b128 {v(xa)}, {v(o, 4)} offset:{64 * pr}")
    for pr in range(2):
        P(f"ds_read_b128 {v(DACC + 8 + 4 * pr, 4)}, {v(xa + 1)} offset:{pr * 8 * 144}")
    for pr in range(2):
        P(f"s_waitcnt lgkmcnt({1 - pr})")
        P(f"buffer_store_dwordx4 {v(DACC + 8 + 4 * pr, 4)}, {v(vT)}, {s(WS_, 4)}, {s(sAO if pr else sXO)} offen sc1")
        vm.add("xd")
    lg.clear()
    P("s_barrier")
    G.stamp(6)

    def x_before(t):
        if t in (7, 15, 23):
            P("s_barrier")
        if t == F1_T:
            G.wvm("xd")
            G.signal(s(sBO))

    w1_pass(x_before, lambda t, dt: None)
    lg.clear()
    G.stamp(7)
    for fs in range(4):
        if fs < 3:
            P("s_barrier")
            G.stamp(17 + fs)
        run(mish(fs, pk=(fs >= XPK)))
    G.stamp(8)
    cs_ = p2_consts(TMP)
    run(cs_[:XC1])
    G.wvm("act")
    G.signal(s(sFL))
    G.stamp(21)
    G.poll_issue()
    run(cs_[XC1:])
    G.stamp(20)

    P("L_p2:")
    XF, DR, DI, B2, WD, GG, WR, WI = 0, 64, 72, 80, 88, 96, TMP + 16, TMP + 24
    G.poll_check()
    G.stamp(9)
    P(f"s_cmp_eq_u32 {s(sK)}, 224")
    P(f"s_cselect_b32 {s(sT2)}, 0, {s(sK)}")
    P(f"s_lshl_b32 {s(sT1)}, {s(sW)}, 11")
    P(f"s_lshl_b32 {s(sT2)}, {s(sT2)}, 13")
    P(f"s_add_u32 {s(sT2)}, {s(sT2)}, {s(sT1)}")
    P(f"s_add_u32 {s(sT2)}, {s(sT2)}, {WS_XD}")
    P(f"s_add_u32 m0, {s(sT1)}, {L_XS}")
    for mt in range(2):
        P(f"buffer_load_dwordx4 {v(vLA)}, {s(WS_, 4)}, {s(sT2)} offen offset:{mt * 1024} sc1 lds")
    vm.add("xs", 2)
    P(f"s_lshl_b32 {s(sT0)}, {s(sK)}, 13")
    P(f"s_add_u32 {s(sT2)}, {s(sT0)}, {s(sT1)}")
    P(f"s_add_u32 {s(sT0)}, {s(sT2)}, {WS_WT}")
    P(f"s_add_u32 {s(sT1)}, {s(sT1)}, {WS_G}")
    for mt in range(2):
        P(f"buffer_load_dwordx4 {v(WD + 4 * mt, 4)}, {v(vLA)}, {s(WS_, 4)}, {s(sT0)} offen offset:{mt * 1024} sc1")
    for nt in range(2):
        P(f"buffer_load_dwordx4 {v(GG + 4 * nt, 4)}, {v(vLA)}, {s(WS_, 4)}, {s(sT1)} offen offset:{nt * 1024} sc1")
    vm.add("wd", 2)
    vm.add("gg", 2)
    P(f"v_add_u32 {v(vT)}, {L_XS}, {v(vLA)}")
    P(f"s_mov_b32 {s(sSC)}, {f32(2.0 / (S_ * D_))}")
    FL.emit(W2P)
    G.wvm("xs")
    G.stamp(22)
    G.swbar(0, 4)
    G.stamp(10)
    P(f"s_cmp_eq_u32 {s(sK)}, 0")
    P("s_cbranch_scc1 L_real")
    P(f"s_cmp_eq_u32 {s(sK)}, 224")
    P("s_cbranch_scc1 L_real1")
    for i in range(8):
        P(f"ds_read_b128 {a(XF + 4 * i, 4)}, {v(vT)} offset:{i * 1024}")
    P("s_branch L_go")
    P("L_real1:")
    P(f"v_add_u32 {v(vT)}, 8, {v(vT)}")
    P("L_real:")
    for i in range(8):
        P(f"ds_read_b64 {a(XF + 4 * i, 2)}, {v(vT)} offset:{i * 1024}")
    for i in range(8):
        P(f"v_accvgpr_write_b32 {a(XF + 4 * i + 2)}, 0")
        P(f"v_accvgpr_write_b32 {a(XF + 4 * i + 3)}, 0")
    P(f"s_mov_b32 {s(sSC)}, {f32(1.0 / (S_ * D_))}")
    P("L_go:")

    def cr(base, i):
        return v(base + 6 * i + 2, 4)

    def ci(base, i):
        return v(base + 6 * i, 4)

    for ks in range(4):
        P(f"s_waitcnt lgkmcnt({6 - 2 * ks})")
        for mt in range(2):
            for d, cm in ((DR, cr), (DI, ci)):
                c = "0" if ks == 0 else v(d + 4 * mt, 4)
                P(f"v_mfma_f32_16x16x32_bf16 {v(d + 4 * mt, 4)}, {a(XF + (ks * 2 + mt) * 4, 4)}, {cm(C64, ks)}, {c}")
    FL.emit(W2P)
    G.wvm("wd")
    for i in range(8):
        P(f"v_lshlrev_b32 {v(WR + i)}, 16, {v(WD + i)}")
        P(f"v_and_b32 {v(WI + i)}, 0xffff0000, {v(WD + i)}")

    def cmul(c_r, c_i, sgn, swap):
        ng = "neg_lo:[0,1,0] neg_hi:[0,1,0]"
        for i in range(0, 8, 2):
            a_, b_ = TMP + i, TMP + 8 + i
            P(f"v_pk_mul_f32 {v(a_, 2)}, {v(DR + i, 2)}, {v(c_r + i, 2)}")
            P(f"v_pk_mul_f32 {v(b_, 2)}, {v(DI + i, 2)}, {v(c_r + i, 2)}")
            P(f"v_pk_fma_f32 {v(a_, 2)}, {v(DI + i, 2)}, {v(c_i + i, 2)}, {v(a_, 2)} {ng if sgn > 0 else ''}")
            P(f"v_pk_fma_f32 {v(b_, 2)}, {v(DR + i, 2)}, {v(c_i + i, 2)}, {v(b_, 2)} {ng if sgn < 0 else ''}")
        first, second = (TMP + 8, TMP) if swap else (TMP, TMP + 8)
        for mt in range(2):
            for j in range(2):
                P(f"v_cvt_pk_bf16_f32 {v(B2 + 4 * mt + j)}, {v(first + 4 * mt + 2 * j)}, {v(first + 4 * mt + 2 * j + 1)}")
                P(f"v_cvt_pk_bf16_f32 {v(B2 + 4 * mt + 2 + j)}, {v(second + 4 * mt + 2 * j)}, {v(second + 4 * mt + 2 * j + 1)}")

    cmul(T1C, T1S, -1, False)
    for ks in range(2):
        for mt in range(2):
            for d, em in ((DR, cr), (DI, ci)):
                c = "0" if ks == 0 else v(d + 4 * mt, 4)
                P(f"v_mfma_f32_16x16x32_bf16 {v(d + 4 * mt, 4)}, {em(E32, mt * 2 + ks)}, {v(B2 + 4 * ks, 4)}, {c}")
    FL.emit(W2P)
    G.wvm("gg")
    for i in range(8):
        P(f"v_mul_f32 {v(GG + i)}, {s(sSC)}, {v(GG + i)}")
    cmul(WR, WI, +1, True)
    for ks in range(2):
        for nt in range(2):
            for d, em in ((DI, cr), (DR, ci)):
                c = "0" if ks == 0 else v(d + 4 * nt, 4)
                P(f"v_mfma_f32_16x16x32_bf16 {v(d + 4 * nt, 4)}, {v(B2 + 4 * ks, 4)}, {em(E32, nt * 2 + ks)}, {c}")
    FL.emit(W2P)
    P(f"s_lshl_b32 {s(sT0)}, {s(sW)}, 11")
    P(f"v_add_u32 {v(vT)}, {L_EX}, {v(vLA)}")
    P(f"v_add_u32 {v(vB)}, {s(sT0)}, {v(vT)}")
    cmul(T2C, T2S, +1, True)
    P(f"ds_write_b128 {v(vB)}, {v(B2, 4)}")
    P(f"ds_write_b128 {v(vB)}, {v(B2 + 4, 4)} offset:1024")
    G.arrive(1)
    f3_addr()
    G.check(1, 4)
    for i in range(8):
        P(f"ds_read_b128 {a(XF + 4 * i, 4)}, {v(vT)} offset:{i * 1024}")
    for ks in range(4):
        P(f"s_waitcnt lgkmcnt({6 - 2 * ks})")
        for nt in range(2):
            for d, cm in ((DI, cr), (DR, ci)):
                c = "0" if ks == 0 else v(d + 4 * nt, 4)
                P(f"v_mfma_f32_16x16x32_bf16 {v(d + 4 * nt, 4)}, {cm(C64, ks)}, {a(XF + (ks * 2 + nt) * 4, 4)}, {c}")
    P(f"s_add_u32 {s(sT2)}, {s(sT2)}, {WS_V}")
    P(f"s_lshl_b32 {s(sFL)}, {s(sW)}, 8")
    P(f"s_add_u32 {s(sFL)}, {s(sFL)}, {s(sK)}")
    P(f"s_mul_i32 {s(sFL)}, {s(sFL)}, {FS}")
    P(f"s_add_u32 {s(sFL)}, {s(sFL)}, {WS_F4}")
    act_base()
    for i in range(0, 8, 2):
        P(f"v_pk_mul_f32 {v(DR + i, 2)}, {v(DR + i, 2)}, {v(GG + i, 2)}")
        P(f"v_pk_mul_f32 {v(DI + i, 2)}, {v(DI + i, 2)}, {v(GG + i, 2)}")
    for nt in range(2):
        for r in range(4):
            P(f"v_cvt_pk_bf16_f32 {v(B2 + 4 * nt + r)}, {v(DR + 4 * nt + r)}, {v(DI + 4 * nt + r)}")
        P(f"buffer_store_dwordx4 {v(B2 + 4 * nt, 4)}, {v(vLA)}, {s(WS_, 4)}, {s(sT2)} offen offset:{nt * 1024} sc1")
    vm.add("vst", 2)
    G.stamp(11)
    P(f"s_cmp_ge_u32 {s(sJ7)}, 4")
    P("s_cbranch_scc0 L_p3")
    P("s_waitcnt vmcnt(0)")
    G.signal(s(sFL), g="")
    P("s_branch L_fin")
    P("L_p3:")
    P(f"s_add_u32 {s(sWO)}, {s(sWO)}, {256 * 896}")
    G.wvm("vst")
    G.signal(s(sFL))
    G.poll_issue()
    G.check(3, 4)
    for st in range(6):
        rd_w2(st)
    P("s_waitcnt lgkmcnt(0)")
    lg.clear()
    for st in range(8, 14):
        issue_w2(st, 0)
        issue_w2(st, 1)
    G.stamp(23)
    G.poll_check()
    G.stamp(12)
    for st in range(DEPTH):
        issue_act(st)
    ffn_loop()
    G.stamp(13)
    P("L_red:")
    G.stamp(15)
    oa, gr = vXR, vXR + 3
    P(f"s_lshl_b32 {s(sT2)}, {s(sRB64)}, 6")
    P(f"s_lshl_b32 {s(sT0)}, {s(sW)}, 3")
    P(f"s_add_u32 {s(sT0)}, {s(sT0)}, {s(sT2)}")
    P(f"v_lshrrev_b32 {v(oa + 1)}, 3, {v(vL)}")
    P(f"v_add_u32 {v(oa + 1)}, {s(sT0)}, {v(oa + 1)}")
    P(f"v_lshlrev_b32 {v(vT)}, 2, {v(oa + 1)}")
    P(f"s_mov_b32 {s(sT0)}, {WS_G}")
    P(f"buffer_load_dword {v(gr)}, {v(vT)}, {s(WS_, 4)}, {s(sT0)} offen sc1")
    wa = TMP
    P(f"v_add_u32 {v(wa)}, {s(sLW)}, {v(vLA)}")
    for c in range(1, 4):
        P(f"v_xor_b32 {v(wa + c)}, {64 * c}, {v(wa)}")
    P("s_waitcnt lgkmcnt(0)")
    for ti in range(4):
        for c in range(4):
            P(f"ds_write_b128 {v(wa + c)}, {v(AC3 + ti * 16 + 4 * c, 4)} offset:{(2 * ti + (c >> 1)) * 8192 + (c & 1) * 1024}")
    row_of_p(P, oa, oa + 1, oa + 2)
    P(f"v_and_b32 {v(oa + 2)}, 7, {v(vL)}")
    P(f"v_lshl_add_u32 {v(oa)}, {v(oa + 2)}, 4, {v(oa)}")
    ra = TMP + 8
    P(f"v_and_b32 {v(ra + 1)}, 3, {v(vL)}")
    P(f"v_and_b32 {v(ra)}, 31, {v(oa + 1)}")
    P(f"v_lshlrev_b32 {v(ra + 2)}, 2, {v(ra + 1)}")
    P(f"v_xor_b32 {v(ra)}, {v(ra)}, {v(ra + 2)}")
    P(f"v_lshlrev_b32 {v(ra)}, 4, {v(ra)}")
    P(f"v_and_b32 {v(ra + 1)}, 1, {v(vL)}")
    P(f"v_lshl_add_u32 {v(ra)}, {v(ra + 1)}, 10, {v(ra)}")
    P(f"v_and_b32 {v(ra + 1)}, 2, {v(vL)}")
    P(f"v_lshl_add_u32 {v(ra)}, {v(ra + 1)}, 12, {v(ra)}")
    P(f"v_and_b32 {v(ra + 1)}, 4, {v(vL)}")
    P(f"v_lshl_add_u32 {v(ra)}, {v(ra + 1)}, 13, {v(ra)}")
    P(f"s_lshl_b32 {s(sT0)}, {s(sCH)}, 14")
    P(f"v_add_u32 {v(ra)}, {s(sT0)}, {v(ra)}")
    P(f"v_add_u32 {v(ra + 1)}, 0x10000, {v(ra)}")
    P(f"s_lshl_b32 {s(sT1)}, {s(sJM)}, 7")
    P("s_waitcnt lgkmcnt(0)")
    P("s_barrier")
    G.stamp(16)
    R = AC3
    for ww in range(8):
        for h in range(2):
            P(f"ds_read_b128 {v(R + ww * 8 + 4 * h, 4)}, {v(ra + (1 if ww < 4 else 0))} offset:{(ww & 3) * 2048 + h * 512}")
    P("s_waitcnt vmcnt(0)")
    P(f"v_sub_f32 {v(gr)}, 1.0, {v(gr)}")
    P(f"v_cvt_pk_bf16_f32 {v(gr)}, {v(gr)}, {v(gr)}")
    P(f"v_lshlrev_b32 {v(vB)}, 16, {v(gr)}")
    P(f"v_add_f32 {v(vB)}, {v(vB)}, {v(vB)}")
    P("s_waitcnt lgkmcnt(8)")
    for r in range(0, 8, 2):
        P(f"v_pk_add_f32 {v(R + r, 2)}, {v(R + r, 2)}, {v(R + 8 + r, 2)}")
        P(f"v_pk_add_f32 {v(R + 16 + r, 2)}, {v(R + 16 + r, 2)}, {v(R + 24 + r, 2)}")
        P(f"v_pk_add_f32 {v(R + r, 2)}, {v(R + r, 2)}, {v(R + 16 + r, 2)}")
    P("s_waitcnt lgkmcnt(0)")
    for r in range(0, 8, 2):
        P(f"v_pk_add_f32 {v(R + 32 + r, 2)}, {v(R + 32 + r, 2)}, {v(R + 40 + r, 2)}")
        P(f"v_pk_add_f32 {v(R + 48 + r, 2)}, {v(R + 48 + r, 2)}, {v(R + 56 + r, 2)}")
        P(f"v_pk_add_f32 {v(R + 32 + r, 2)}, {v(R + 32 + r, 2)}, {v(R + 48 + r, 2)}")
        P(f"v_pk_fma_f32 {v(R + r, 2)}, {v(R + r, 2)}, {v(vB, 2)}, {v(R + 32 + r, 2)} op_sel_hi:[1,0,1]")
    for i in range(4):
        P(f"v_cvt_pk_bf16_f32 {v(R + 8 + i)}, {v(R + 2 * i)}, {v(R + 2 * i + 1)}")
    P(f"buffer_store_dwordx4 {v(R + 8, 4)}, {v(oa)}, {s(OUT_, 4)}, {s(sT1)} offen")
    P(f"s_add_u32 {s(sT0)}, s2, {s(sW)}")
    P(f"s_cmp_eq_u32 {s(sT0)}, 0")
    P("s_cbranch_scc0 L_fin")
    P(f"s_mov_b32 {s(sT0)}, {WS_EP}")
    G.signal(s(sT0))
    P("s_branch L_fin")

    P("L_y1:")
    vm.q = y_vm
    lg.clear()
    rd_setup()
    G.stamp(3)

    def y_bar(n):
        assert vm.has(("st", n))
        P(f"s_waitcnt vmcnt({vm.n(('st', n))}) lgkmcnt(0)")
        P("s_barrier")
        if n < 7:
            rdx(n)
        if n + LA < NSTG:
            run(stage(n + LA))
        if n == 11:
            FL.add([(lambda st=st, hf=hf: issue_w2(st, hf)) for st in range(8) for hf in range(2)])

    for n in range(10):
        y_bar(n)
        if n == 0:
            G.stamp(4)
            ptr_setup()
            run(late_setup())
        if n == 7:
            G.stamp(6)
    tag_ready()
    bias_mfma(True)
    if YPRIO:
        P(f"s_setprio {YPRIO}")
    y_bar(10)
    G.stamp(5)
    ybar_at = {3: 11, 11 - YEARLY: 12, 19 - YEARLY: 13}
    cnt = {"done": 0}

    def y_before(t):
        if t in ybar_at:
            y_bar(ybar_at[t])
            G.stamp(17 + ybar_at[t] - 11)

    def y_fill(t, dt):
        if t >= 3:
            want = (2 * (t - 3) + dt + 1) * YW2 // 50
            while cnt["done"] < want:
                FL.emit(1)
                cnt["done"] += 1

    w1_pass(y_before, y_fill)
    G.stamp(7)
    G.arrive(2)
    if YPRIO:
        P("s_setprio 0")
    FL.drain()
    P(f"s_add_u32 {s(sT2)}, {s(sLW)}, 0x10000")
    P(f"s_sub_u32 {s(sXO)}, {s(sWO)}, {(256 - 64) * 896}")
    wx = [(lambda st=st, hf=hf: issue_w2(st, hf, sT2, sXO, "w2x")) for st in range(8) for hf in range(2)]
    for fs in range(4):
        m = mish(fs)
        if fs == 0:
            run(m)
            G.check(2, 4)
        else:
            per = len(m) // (NX + 1) + 1
            for i in range(0, len(m), per):
                if i and wx:
                    wx.pop(0)()
                run(m[i:i + per])
    G.stamp(8)
    lg.clear()
    G.wvm(("w2", 5))
    for st in range(6):
        rd_w2(st)
    f3_addr()
    act_base()
    mg = m_frags(VF)
    run(mg[:YM1])
    G.wvm("act")
    G.signal(s(sFL))
    G.stamp(9)
    run(wx)
    wx = []
    P("s_waitcnt lgkmcnt(0)")
    lg.clear()
    for st in range(8, 14):
        issue_w2(st, 0)
        issue_w2(st, 1)
    G.stamp(10)
    run(mg[YM1:YM2])
    G.wvm(("w2x", 7))
    G.arrive(3)
    G.poll_issue()
    run(mg[YM2:])
    G.stamp(11)
    G.poll_check()
    G.stamp(12)
    for st in range(DEPTH):
        issue_act(st)
    G.stamp(23)
    P("s_waitcnt lgkmcnt(0)")
    g0 = vB
    state = {"arr": False}

    def v_setup():
        P(f"v_lshlrev_b32 {v(vT)}, 2, {v(vM)}")
        P(f"s_lshl_b32 {s(sXO)}, {s(sRB64)}, 8")
        P(f"s_add_u32 {s(sT1)}, {s(sXO)}, {WS_G}")
        for nt in range(2):
            P(f"buffer_load_dword {v(g0 + nt)}, {v(vT)}, {s(WS_, 4)}, {s(sT1)} offen offset:{128 * nt} sc1")
        vm.add("g", 2)
        P(f"v_lshlrev_b32 {v(vT)}, 13, {v(vG4)}")
        P(f"v_lshl_add_u32 {v(vT)}, {v(vN)}, 4, {v(vT)}")
        P(f"s_mul_i32 {s(sT2)}, {s(sRG)}, {56 * 8192}")
        P(f"s_add_u32 {s(sXO)}, {s(sXO)}, {s(sT2)}")

    def v_issue(i):
        L = G.label("L_vs")
        if i == 7:
            P(f"s_cmp_lt_u32 {s(sRG)}, 3")
            P(f"s_cbranch_scc1 {L}")
        for half in range(2):
            P(f"s_add_u32 m0, {s(sLW)}, {((i + 6) & 7) * 8192 + half * 1024}")
            P(f"buffer_load_dwordx4 {v(vT)}, {s(V_, 4)}, {s(sXO)} offen sc1 lds")
            P(f"s_add_u32 {s(sXO)}, {s(sXO)}, {4 * 8192}")
            vm.add(("v", i), 1, "XY" if i < 7 else "X")
        if i == 7:
            P(f"{L}:")

    def y_after(st):
        if st == F4_AT:
            P(f"s_mul_i32 {s(sT1)}, {s(sRG)}, 56")
            P(f"v_add_u32 {v(vPA)}, {s(sT1)}, {v(vL)}")
            P(f"v_min_u32 {v(vPA)}, 224, {v(vPA)}")
            P(f"s_lshr_b32 {s(sT1)}, {s(sRB64)}, 3")
            P(f"s_lshl_b32 {s(sT1)}, {s(sT1)}, 8")
            P(f"s_add_u32 {s(sT1)}, {s(sT1)}, {WS_F4 // FS}")
            P(f"v_add_u32 {v(vPA)}, {s(sT1)}, {v(vPA)}")
            P(f"v_mul_u32_u24 {v(vPA)}, {FS}, {v(vPA)}")
            G.poll_issue()

    ffn_loop(y_after, hi=VCHK + 1)
    assert F4_AT <= VCHK
    G.stamp(20)
    G.wvm("poll")
    P(f"v_cmp_ne_u32 vcc, {s(sTAG)}, {v(vPR)}")
    P("s_cbranch_vccz L_vfast")
    sv = ({k: list(q) for k, q in vm.q.items()}, {k: list(q) for k, q in lg.q.items()}, list(FL.q))
    ffn_loop(lo=VCHK + 1)
    G.poll_issue()
    G.poll_check()
    G.stamp(14)
    v_setup()
    for i in range(8):
        v_issue(i)
    vm_slow = {k: list(q) for k, q in vm.q.items()}
    P("s_branch L_vjoin")
    P("L_vfast:")
    vm.q, lg.q, FL.q = sv
    v_setup()
    for i in range(VCHK - 5):
        v_issue(i)
    ffn_loop(lambda st: v_issue(st - 6), lo=VCHK + 1)
    P("L_vjoin:")
    vm.q = vm_slow
    G.stamp(13)
    og = vB + 2
    G.wvm("g")
    for nt in range(2):
        P(f"v_sub_f32 {v(og + 2 * nt)}, 1.0, {v(g0 + nt)}")
        P(f"v_cvt_pk_bf16_f32 {v(og + 2 * nt)}, {v(og + 2 * nt)}, {v(og + 2 * nt)}")
        P(f"v_lshlrev_b32 {v(og + 2 * nt)}, 16, {v(og + 2 * nt)}")
        P(f"v_add_f32 {v(og + 2 * nt)}, {v(og + 2 * nt)}, {v(og + 2 * nt)}")
    va = vTW
    P(f"v_lshl_add_u32 {v(va)}, {v(vM)}, 2, {s(sLW)}")
    P(f"v_lshl_add_u32 {v(va)}, {v(vH)}, 10, {v(va)}")
    P(f"v_add_u32 {v(va + 1)}, 128, {v(va)}")

    def rd_v(i):
        b = VF + (i & 1) * 8
        off = ((i + 6) & 7) * 32
        for nt in range(2):
            for j in range(2):
                P(f"ds_read2st64_b32 {v(b + 4 * nt + 2 * j, 2)}, {v(va + nt)} offset0:{off + 2 * j} offset1:{off + 2 * j + 1}")
        lg.add(("v", i), 4)

    lg.clear()
    G.wvm(("v", 0))
    rd_v(0)
    for ti in range(4):
        for r in range(0, 16, 2):
            d = v(AC3 + ti * 16 + r, 2)
            P(f"v_pk_mul_f32 {d}, {d}, {v(og + 2 * (ti & 1), 2)} op_sel_hi:[1,0]")
    for i in range(8):
        if i == 7:
            P(f"s_cmp_lt_u32 {s(sRG)}, 3")
            P("s_cbranch_scc1 L_red")
        if i + 1 < 8:
            G.wvm(("v", i + 1))
            rd_v(i + 1)
        G.wlg(("v", i))
        b = VF + (i & 1) * 8
        for dt in range(2):
            for nt in range(2):
                d = v(AC3 + (dt * 2 + nt) * 16, 16)
                P(f"v_mfma_f32_32x32x16_bf16 {d}, {v(MF + (i * 2 + dt) * 4, 4)}, {v(b + 4 * nt, 4)}, {d}")
    P("s_branch L_red")

    P("L_side:")
    sU = sRB
    P(f"v_mov_b32 {v(t0)}, 0")
    P(f"v_lshlrev_b32 {v(t1)}, 2, {v(vL)}")
    P(f"v_add_u32 {v(t1)}, {L_SY}, {v(t1)}")
    P(f"ds_write_b32 {v(t1)}, {v(t0)}")
    P("s_waitcnt lgkmcnt(0)")
    G.stamp(2)
    P(f"s_load_dword {s(sTAG)}, s[24:25], {WS_EP}")
    G.srd(X_, 4, S_ * D_ * 2)
    G.srd(W2_, 16, F_ * D_ * 2)
    G.srd(WS_, 24, WS_END)
    G.srd(WR_, 6, S_ * 225 * 2)
    G.srd(WI_, 8, S_ * 225 * 2)
    G.srd(B1_, 18, D_ * 2)
    P(f"s_sub_u32 {s(sU)}, s2, 224")
    P(f"s_and_b32 {s(sT0)}, {s(sU)}, 7")
    P(f"s_lshl_b32 {s(sT0)}, {s(sT0)}, 2")
    P(f"s_add_u32 {s(sT0)}, {s(sT0)}, {s(sRG)}")
    P(f"s_lshl_b32 {s(sT0)}, {s(sT0)}, 2")
    P(f"s_lshr_b32 {s(sT1)}, {s(sU)}, 3")
    P(f"s_add_u32 {s(sT0)}, {s(sT0)}, {s(sT1)}")
    P(f"s_mul_i32 {s(sXO)}, {s(sT0)}, 7200")
    P(f"s_lshl_b32 {s(sT0)}, {s(sW)}, 13")
    P(f"s_cmp_lg_u32 {s(sCH)}, 0")
    P(f"s_cselect_b32 {s(WR_)}, {s(WI_)}, {s(WR_)}")
    P(f"s_cselect_b32 {s(WR_ + 1)}, {s(WI_ + 1)}, {s(WR_ + 1)}")
    for half in range(2):
        P(f"s_add_u32 m0, {s(sT0)}, {half * 4096}")
        P(f"s_add_u32 {s(sT1)}, {s(sXO)}, {half * 4096}")
        for i in range(4):
            if half == 1 and i == 3:
                P("s_mov_b64 exec, 3")
            P(f"buffer_load_dwordx4 {v(vLA)}, {s(WR_, 4)}, {s(sT1)} offen offset:{i * 1024} lds")
    P("s_mov_b64 exec, -1")
    XG, GW = 64, 96
    oa = TMP + 4
    P(f"s_lshl_b32 {s(sT0)}, {s(sU)}, 6")
    P(f"s_lshl_b32 {s(sT1)}, {s(sW)}, 3")
    P(f"s_add_u32 {s(sT2)}, {s(sT0)}, {s(sT1)}")
    P(f"v_lshrrev_b32 {v(oa + 1)}, 3, {v(vL)}")
    P(f"v_add_u32 {v(oa + 1)}, {s(sT2)}, {v(oa + 1)}")
    row_of_p(P, oa, oa + 1, oa + 2)
    P(f"v_and_b32 {v(vT)}, 7, {v(vL)}")
    P(f"v_lshlrev_b32 {v(vT)}, 4, {v(vT)}")
    P(f"v_add_u32 {v(oa)}, {v(oa)}, {v(vT)}")
    for i in range(7):
        P(f"buffer_load_dwordx4 {v(XG + 4 * i, 4)}, {v(oa)}, {s(X_, 4)}, 0 offen offset:{i * 128}")
        P(f"buffer_load_dwordx4 {v(GW + 4 * i, 4)}, {v(vT)}, {s(B1_, 4)}, 0 offen offset:{i * 128}")
    P("s_waitcnt lgkmcnt(0)")
    P(f"s_mul_i32 {s(sTAG)}, {s(sTAG)}, 1664525")
    P(f"s_add_u32 {s(sTAG)}, {s(sTAG)}, 1013904223")
    la, ga_, o = TMP, TMP + 1, 128
    P(f"s_lshl_b32 {s(sT0)}, {s(sW)}, 2")
    P(f"v_add_u32 {v(TMP + 2)}, {s(sT0)}, {v(vG4)}")
    P(f"v_mul_u32_u24 {v(la)}, 450, {v(vN)}")
    P(f"v_lshl_add_u32 {v(la)}, {v(TMP + 2)}, 1, {v(la)}")
    P(f"v_lshlrev_b32 {v(ga_)}, 13, {v(TMP + 2)}")
    P(f"v_lshl_add_u32 {v(ga_)}, {v(vN)}, 4, {v(ga_)}")
    P(f"s_lshl_b32 {s(sT0)}, {s(sU)}, 8")
    P(f"s_add_u32 {s(sT0)}, {s(sT0)}, {WS_WT}")
    P("s_waitcnt vmcnt(14)")
    P("s_barrier")
    G.stamp(3)

    def wt_rd(i):
        for r in range(4):
            P(f"ds_read_u16 {v(o + 8 * i + r)}, {v(la)} offset:{r * 8192 + 64 * i}")
            P(f"ds_read_u16 {v(o + 8 * i + 4 + r)}, {v(la)} offset:{32768 + r * 8192 + 64 * i}")

    wt_rd(0)
    for i in range(8):
        if i == 7:
            P(f"s_cmp_lg_u32 {s(sW)}, 0")
            P("s_cbranch_scc1 L_wtdone")
        if i + 1 < 8:
            wt_rd(i + 1)
        P(f"s_waitcnt lgkmcnt({8 if i < 7 else 0})")
        for r in range(4):
            P(f"v_lshl_or_b32 {v(o + 8 * i + r)}, {v(o + 8 * i + 4 + r)}, 16, {v(o + 8 * i + r)}")
        P(f"buffer_store_dwordx4 {v(o + 8 * i, 4)}, {v(ga_)}, {s(WS_, 4)}, {s(sT0)} offen sc1")
        P(f"s_add_u32 {s(sT0)}, {s(sT0)}, {32 * 8192}")
    P("L_wtdone:")
    G.stamp(4)
    P("s_waitcnt vmcnt(7) lgkmcnt(0)")
    z, xa2, ga2 = TMP, TMP + 8, TMP + 12
    P(f"s_mov_b32 {s(sT1)}, 0xffff0000")
    P(f"v_mov_b32 {v(z)}, 0")
    P(f"v_mov_b32 {v(z + 1)}, 0")
    for i in range(28):
        xx, gg = xa2 + 2 * (i & 1), ga2 + 2 * (i & 1)
        P(f"v_lshlrev_b32 {v(xx)}, 16, {v(XG + i)}")
        P(f"v_and_b32 {v(xx + 1)}, {s(sT1)}, {v(XG + i)}")
        P(f"v_lshlrev_b32 {v(gg)}, 16, {v(GW + i)}")
        P(f"v_and_b32 {v(gg + 1)}, {s(sT1)}, {v(GW + i)}")
        P(f"v_pk_mul_f32 {v(xx, 2)}, {v(xx, 2)}, {v(gg, 2)}")
        P(f"v_cvt_pk_bf16_f32 {v(gg)}, {v(xx)}, {v(xx + 1)}")
        P(f"v_lshlrev_b32 {v(xx)}, 16, {v(gg)}")
        P(f"v_and_b32 {v(xx + 1)}, {s(sT1)}, {v(gg)}")
        P(f"v_pk_add_f32 {v(z, 2)}, {v(z, 2)}, {v(xx, 2)}")
    P(f"v_add_f32 {v(z)}, {v(z)}, {v(z + 1)}")
    P(f"v_add_f32_dpp {v(z)}, {v(z)}, {v(z)} quad_perm:[1,0,3,2] row_mask:0xf bank_mask:0xf")
    P(f"v_add_f32_dpp {v(z)}, {v(z)}, {v(z)} quad_perm:[2,3,0,1] row_mask:0xf bank_mask:0xf")
    P(f"v_add_f32_dpp {v(z)}, {v(z)}, {v(z)} row_half_mirror row_mask:0xf bank_mask:0xf")
    P(f"v_cvt_pk_bf16_f32 {v(z)}, {v(z)}, {v(z)}")
    P(f"v_lshlrev_b32 {v(z)}, 16, {v(z)}")
    P(f"v_mul_f32 {v(z)}, {f32(-LOG2E)}, {v(z)}")
    P(f"v_exp_f32 {v(z)}, {v(z)}")
    P(f"v_add_f32 {v(z)}, 1.0, {v(z)}")
    P(f"v_rcp_f32 {v(z)}, {v(z)}")
    P(f"v_cvt_pk_bf16_f32 {v(z)}, {v(z)}, {v(z)}")
    P(f"v_lshlrev_b32 {v(z)}, 16, {v(z)}")
    P(f"v_and_b32 {v(vT)}, 63, {v(oa + 1)}")
    P(f"v_lshlrev_b32 {v(vT)}, 2, {v(vT)}")
    P(f"v_add_u32 {v(vT)}, {L_GT}, {v(vT)}")
    P(f"ds_write_b32 {v(vT)}, {v(z)}")
    P("s_waitcnt vmcnt(0) lgkmcnt(0)")
    P("s_barrier")
    G.stamp(5)
    P(f"s_cmp_eq_u32 {s(sW)}, 0")
    P("s_cbranch_scc0 L_sig2")
    P(f"v_add_u32 {v(vT)}, {L_GT}, {v(vLA)}")
    P(f"ds_read_b128 {v(TMP + 8, 4)}, {v(vT)}")
    P(f"s_lshl_b32 {s(sT0)}, {s(sU)}, 8")
    P(f"s_add_u32 {s(sT0)}, {s(sT0)}, {WS_G}")
    P("s_waitcnt lgkmcnt(0)")
    P("s_mov_b64 exec, 0xffff")
    P(f"buffer_store_dwordx4 {v(TMP + 8, 4)}, {v(vLA)}, {s(WS_, 4)}, {s(sT0)} offen sc1")
    P("s_mov_b64 exec, -1")
    P("s_waitcnt vmcnt(0)")
    P(f"s_mul_i32 {s(sT0)}, {s(sU)}, {FS}")
    P(f"s_add_u32 {s(sT0)}, {s(sT0)}, {WS_F2}")
    G.signal(s(sT0))
    P("L_sig2:")
    P(f"s_add_u32 {s(sT0)}, {s(sU)}, {s(sCH)}")
    P(f"s_cmp_eq_u32 {s(sT0)}, 0")
    P("s_cbranch_scc0 L_fin")
    for ins in p2_consts(TMP):
        P(ins)
    P(f"s_mov_b32 {s(sK)}, 224")
    f1_addr()
    G.poll_issue()
    P("s_waitcnt vmcnt(0)")
    P("s_branch L_p2")

    P("L_fin:")
    if AMP:
        P("s_waitcnt vmcnt(0)")
        G.stamp(24)
        P("s_cmp_eq_u32 s2, 8")
        P("s_cbranch_scc0 L_end")
        P(f"s_cmp_eq_u32 {s(sW)}, {AMP[2] if len(AMP) > 2 else 0}")
        P("s_cbranch_scc0 L_end")
        P("s_sub_u32 s96, s96, s94")
        P("s_mul_i32 s96, s96, 10")
        P("s_memrealtime s[98:99]")
        P("s_waitcnt lgkmcnt(0)")
        P("s_add_u32 s96, s96, s98")
        P("L_amp:")
        P("s_memrealtime s[98:99]")
        P("s_waitcnt lgkmcnt(0)")
        P("s_sub_u32 s97, s98, s96")
        P("s_cmp_lt_i32 s97, 0")
        P("s_cbranch_scc1 L_amp")
    if STAMP:
        P("s_waitcnt vmcnt(0)")
        G.stamp(24)
        G.stamp(25, True)
        P(f"s_getreg_b32 {s(sT0)}, hwreg(HW_REG_XCC_ID)")
        P(f"v_writelane_b32 v31, {s(sT0)}, 31")
        P(f"s_getreg_b32 {s(sT0)}, hwreg(HW_REG_HW_ID)")
        P(f"v_writelane_b32 v31, {s(sT0)}, 32")
        G.srd(X_, 24, 1 << 20, WS_TS)
        P(f"s_lshl_b32 {s(sT0)}, s2, 3")
        P(f"s_add_u32 {s(sT0)}, {s(sT0)}, {s(sW)}")
        P(f"s_lshl_b32 {s(sT0)}, {s(sT0)}, 8")
        P(f"v_lshlrev_b32 v1, 2, v1")
        P(f"buffer_store_dword v31, v1, {s(X_, 4)}, {s(sT0)} offen")
    P("L_end:")
    P("s_endpgm")
    G.P.resolve()
    out = HEADER
    out += f"; @launch grid=(256,1,1) block=(512,1,1) lds={LDS}\n"
    out += '.amdgcn_target "amdgcn-amd-amdhsa--gfx950"\n.text\n'
    out += G.P.text()
    out += f""".section .rodata,"a"
.p2align 6
.amdhsa_kernel {K}
  .amdhsa_next_free_vgpr 256
  .amdhsa_next_free_sgpr 102
  .amdhsa_accum_offset 192
  .amdhsa_group_segment_fixed_size 0
  .amdhsa_kernarg_size 88
  .amdhsa_user_sgpr_count 2
  .amdhsa_user_sgpr_kernarg_segment_ptr 1
  .amdhsa_system_sgpr_workgroup_id_x 1
.end_amdhsa_kernel
"""
    return out


def main():
    global STAMP, AMP
    if "--amp" in sys.argv:
        i = sys.argv.index("--amp")
        AMP = [int(x) for x in sys.argv[i + 1].split(",")]
        del sys.argv[i:i + 2]
    if "--stamp" in sys.argv:
        STAMP = True
        sys.argv.remove("--stamp")
    for x in list(sys.argv):
        if x.startswith("+"):
            OPT.add(x[1:])
            sys.argv.remove(x)
        elif "=" in x:
            k, val = x.split("=")
            globals()[k] = int(val)
            sys.argv.remove(x)
    out = build()
    path = sys.argv[1] if len(sys.argv) > 1 else f"cdna_kernels/{NAME}.s"
    open(path, "w").write(out)


if __name__ == "__main__":
    main()
```

```python
import sys
from asmlib import Prog, v, a, s, f32

NAME = "gated_mix__spectral_gfnet__dense_activation_mish__prompt"
S_, D_, F_ = 2048, 448, 1792
WS_EP = 0
FS = 16
FW = 4
F4_AT = 7
WS_F1 = 0x100000
WS_F2 = 0x8000
WS_F4 = 0x40000
WS_F3 = 0x80000
WS_FX = 0x60000
WS_G = 0x10000
WS_XD, WS_WT, WS_V, WS_ACT, WS_TS = 2 << 20, 4 << 20, 6 << 20, 8 << 20, 24 << 20
WS_END = 16 << 20
LOG2E = 1.4426950408889634
L_TAB, L_XS, L_EX, L_SY = 131072, 131072, 139264, 159744
LDS = 163840
STAMP = False
AMP = None
SPIN = 20000
OPT = set()

HEADER = """; Kernarg layout for this problem (88 bytes, ptrs only, base s[0:1]):
"""

X_, W1_, B1_, W2_, OUT_, WS_, V_, WR_, WI_ = 28, 32, 36, 40, 44, 48, 52, 56, 60
sW, sJ7, sJM, sXCD, sRB, sQ, sSG, sTAG = 64, 65, 66, 67, 68, 69, 70, 71
sT0, sT1, sT2, sXO, sAO, sFL, sK, sCNT = 72, 73, 74, 75, 76, 77, 78, 79
sRG, sCH, sWO, sLW, sA0, sA1, sRB64, sSC = 80, 81, 82, 83, 84, 85, 86, 87
sC0 = 88
sM = 90
sLX, sLA, sBO, sI1, sI3 = 20, 21, 22, 23, 3
sFAST, sXC = 92, 93
vPA, vPR = 8, 9
vEP = 23
vSG = 26
L_XT = 147456
PRE_CONST = 40
XFILL = 2
F1_AT = 1
DEPTH = 4
vL, vM, vH, vN, vG4, vT, vLA = 1, 2, 3, 4, 5, 6, 7
vXD = 8
vAD, vWD = 10, 11
vXR = 12
vTA = 16
vTW = 18
vTT = 22
vB = 24
TMP = 32
ACC, DACC = 64, 96
C64, E32, T1C, T1S, T2C, T2S = 112, 136, 160, 168, 176, 184
MF = 128


class Cnt:
    def __init__(self, mx):
        self.q = {"X": [], "Y": []}
        self.mx = mx

    def add(self, tag, n=1, g="XY"):
        for k in g:
            self.q[k] += [tag] * n

    def has(self, *tags):
        return any(t in tags for q in self.q.values() for t in q)

    def n(self, *tags, g="XY"):
        best = self.mx
        for k in g:
            q = self.q[k]
            idx = [i for i, t in enumerate(q) if t in tags]
            if idx:
                best = min(best, len(q) - 1 - idx[-1])
        return best

    def clear(self):
        self.q = {"X": [], "Y": []}


class Gen:
    def __init__(self):
        self.P = Prog()
        self.vm = Cnt(63)
        self.lg = Cnt(15)
        self.nl = 0

    def __call__(self, t):
        self.P(t)

    def srd(self, d, b, nbytes, off=0):
        P = self.P
        if off:
            P(f"s_add_u32 {s(d)}, {s(b)}, {off}")
            P(f"s_addc_u32 {s(d+1)}, {s(b+1)}, 0")
        else:
            P(f"s_mov_b32 {s(d)}, {s(b)}")
            P(f"s_mov_b32 {s(d+1)}, {s(b+1)}")
        P(f"s_mov_b32 {s(d+2)}, {nbytes}")
        P(f"s_mov_b32 {s(d+3)}, 0x00020000")

    def stamp(self, i, real=False):
        if AMP and i in AMP[:2]:
            self.P(f"{'s_memtime' if 'ampcyc' in OPT else 's_memrealtime'} s[{94 + 2 * AMP.index(i)}:{95 + 2 * AMP.index(i)}]")
            self.P("s_waitcnt lgkmcnt(0)")
        if not STAMP:
            return
        self.P(f"{'s_memrealtime' if real else 's_memtime'} s[100:101]")
        self.P("s_waitcnt lgkmcnt(0)")
        self.P(f"v_writelane_b32 v31, s100, {i}")

    def wvm(self, *tags, g="XY"):
        assert self.vm.has(*tags), tags
        self.P(f"s_waitcnt vmcnt({self.vm.n(*tags, g=g)})")

    def wlg(self, *tags, g="XY"):
        assert self.lg.has(*tags), tags
        self.P(f"s_waitcnt lgkmcnt({self.lg.n(*tags, g=g)})")

    def label(self, base):
        self.nl += 1
        return f"{base}{self.nl}"

    def poll(self, vaddr, soff, vtmp, hook=None):
        P = self.P
        L = self.label("poll")
        P(f"s_mov_b32 {s(sCNT)}, {SPIN}")
        if hook:
            P(f"buffer_load_dword {v(vtmp)}, {v(vaddr)}, {s(WS_, 4)}, {soff} offen sc1")
            P("s_waitcnt vmcnt(0)")
            hook()
            P(f"v_cmp_ne_u32 vcc, {s(sTAG)}, {v(vtmp)}")
            P(f"s_cbranch_vccz {L}_ok")
        P(f"{L}:")
        P(f"buffer_load_dword {v(vtmp)}, {v(vaddr)}, {s(WS_, 4)}, {soff} offen sc1")
        P("s_waitcnt vmcnt(0)")
        P(f"v_cmp_ne_u32 vcc, {s(sTAG)}, {v(vtmp)}")
        P(f"s_cbranch_vccz {L}_ok")
        P(f"s_sleep {SLP}")
        P(f"s_sub_u32 {s(sCNT)}, {s(sCNT)}, 1")
        P(f"s_cbranch_scc0 {L}")
        P(f"{L}_ok:")
        self.vm.clear()

    def poll_issue(self):
        self.P(f"v_mov_b32 {v(vPR)}, {s(sTAG)}")
        self.P("s_mov_b64 exec, 0xffffffff")
        self.P(f"buffer_load_dword {v(vPR)}, {v(vPA)}, {s(WS_, 4)}, 0 offen {pf()}")
        self.P("s_mov_b64 exec, -1")
        self.vm.add("poll")

    def poll_check(self, slow=None):
        P = self.P
        L = self.label("poll")
        self.wvm("poll")
        P(f"v_cmp_ne_u32 vcc, {s(sTAG)}, {v(vPR)}")
        P(f"s_cbranch_vccz {L}_ok")
        save = {k: list(q) for k, q in self.vm.q.items()}
        if slow:
            P("s_waitcnt vmcnt(0)")
            slow()
        P(f"s_mov_b32 {s(sCNT)}, {SPIN}")
        P(f"{L}:")
        P("s_mov_b64 exec, 0xffffffff")
        P(f"buffer_load_dword {v(vPR)}, {v(vPA)}, {s(WS_, 4)}, 0 offen {pf()}")
        P("s_mov_b64 exec, -1")
        P("s_waitcnt vmcnt(0)")
        P(f"v_cmp_ne_u32 vcc, {s(sTAG)}, {v(vPR)}")
        P(f"s_cbranch_vccz {L}_ok")
        P(f"s_sleep {SLP}")
        P(f"s_sub_u32 {s(sCNT)}, {s(sCNT)}, 1")
        P(f"s_cbranch_scc0 {L}")
        P(f"{L}_ok:")
        self.vm.q = save

    def sp_issue(self, n):
        P = self.P
        P(f"s_load_dwordx{min(n, 16)} s[4:{3 + min(n, 16)}], s[24:25], {s(sPO)} glc")
        if n == 32:
            P(f"s_add_u32 s98, {s(sPO)}, 64")
            P(f"s_add_u32 s99, {s(sPO)}, 96")
            P(f"s_load_dwordx8 s[56:63], s[24:25], s98 glc")
            P(f"s_load_dwordx8 s[28:35], s[24:25], s99 glc")

    def sp_test(self, n):
        P = self.P
        P("s_waitcnt lgkmcnt(0)")
        pairs = list(range(4, 4 + min(n, 16), 2)) + (list(range(56, 64, 2)) + list(range(28, 36, 2)) if n == 32 else [])
        P(f"s_or_b64 s[98:99], {s(pairs[0], 2)}, {s(pairs[1], 2)}")
        P(f"s_and_b64 s[4:5], {s(pairs[0], 2)}, {s(pairs[1], 2)}")
        for p in pairs[2:]:
            P(f"s_or_b64 s[98:99], s[98:99], {s(p, 2)}")
            P(f"s_and_b64 s[4:5], s[4:5], {s(p, 2)}")
        P(f"s_xor_b64 s[98:99], s[98:99], {s(sTG2, 2)}")
        P(f"s_xor_b64 s[4:5], s[4:5], {s(sTG2, 2)}")
        P(f"s_or_b64 s[4:5], s[4:5], s[98:99]")

    def sp_check(self, n):
        P = self.P
        L = self.label("sp")
        P(f"s_mov_b32 {s(sCNT)}, {SPIN}")
        P(f"{L}:")
        self.sp_test(n)
        P(f"s_cbranch_scc0 {L}_ok")
        P(f"s_sleep {SSLP}")
        self.sp_issue(n)
        P(f"s_sub_u32 {s(sCNT)}, {s(sCNT)}, 1")
        P(f"s_cbranch_scc0 {L}")
        P("s_waitcnt lgkmcnt(0)")
        P(f"{L}_ok:")

    def signal(self, soff, g="XY", val=None, line=False):
        P = self.P
        if line:
            for j in range(4):
                P(f"v_mov_b32 {v(vSG + j)}, {s(sTAG)}")
            P("s_mov_b64 exec, 0xff")
            P(f"buffer_store_dwordx4 {v(vSG, 4)}, {v(vLA)}, {s(WS_, 4)}, {soff} offen sc1")
            P("s_mov_b64 exec, -1")
            return
        if FW >= 64:
            for j in range(4):
                P(f"v_mov_b32 {v(vSG + j)}, {s(sTAG if val is None else val)}")
            P(f"s_mov_b64 exec, {hex((1 << (FW // 16)) - 1)}")
            P(f"buffer_store_dwordx4 {v(vSG, 4)}, {v(vLA)}, {s(WS_, 4)}, {soff} offen sc1")
        else:
            P(f"v_mov_b32 {v(vSG)}, {s(sTAG if val is None else val)}")
            P("s_mov_b64 exec, 1")
            P(f"buffer_store_dword {v(vSG)}, {v(vLA)}, {s(WS_, 4)}, {soff} offen sc1")
        P("s_mov_b64 exec, -1")
        self.vm.add("flag", 1, g)

    def swbar(self, word, count):
        self.arrive(word)
        self.check(word, count)

    def arrive(self, word):
        P = self.P
        P(f"v_mov_b32 {v(vB + 5)}, {L_SY + 4 * word}")
        P(f"v_mov_b32 {v(vB + 6)}, 1")
        P("s_mov_b64 exec, 1")
        P(f"ds_add_u32 {v(vB + 5)}, {v(vB + 6)}")
        P("s_mov_b64 exec, -1")

    def check(self, word, count):
        P = self.P
        L = self.label("swb")
        P(f"v_mov_b32 {v(vB + 5)}, {L_SY + 4 * word}")
        P(f"s_mov_b32 {s(sCNT)}, {SPIN * 64}")
        P(f"{L}:")
        P(f"ds_read_b32 {v(vB + 6)}, {v(vB + 5)}")
        P("s_waitcnt lgkmcnt(0)")
        P(f"v_cmp_gt_u32 vcc, {count}, {v(vB + 6)}")
        P(f"s_cbranch_vccz {L}_ok")
        if LSLP:
            P(f"s_sleep {LSLP}")
        P(f"s_sub_u32 {s(sCNT)}, {s(sCNT)}, 1")
        P(f"s_cbranch_scc0 {L}")
        P(f"{L}_ok:")
        self.lg.clear()


def stf(k):
    if k + "plain" in OPT:
        return ""
    if k + "sc01" in OPT:
        return "sc0 sc1"
    if k + "nt" in OPT:
        return "nt"
    return "sc1"


def pf():
    if "pnt" in OPT:
        return "sc1 nt"
    if "p01" in OPT:
        return "sc0 sc1"
    if "p01nt" in OPT:
        return "sc0 sc1 nt"
    return "sc1"


def fma_const(dst, src, c, addend):
    if c == 0:
        return f"v_mov_b32 {v(dst)}, {v(addend)}"
    if c == 1:
        return f"v_add_f32 {v(dst)}, {v(src)}, {v(addend)}"
    return f"v_fmamk_f32 {v(dst)}, {v(src)}, {f32(float(c))}, {v(addend)}"


def p2_consts(t):
    o = []
    af, bs, fb, fn, lm = t, t + 1, t + 2, t + 3, t + 4
    cs, sn = t + 8, t + 12
    o.append(f"s_lshl_b32 {s(sT0)}, {s(sW)}, 4")
    o.append(f"v_add_u32 {v(af)}, {s(sT0)}, {v(vN)}")
    o.append(f"v_cvt_f32_u32 {v(af)}, {v(af)}")
    o.append(f"v_mul_f32 {v(af)}, {f32(1.0 / 64)}, {v(af)}")
    o.append(f"v_lshlrev_b32 {v(fb)}, 2, {v(vG4)}")
    o.append(f"v_cvt_f32_u32 {v(fb)}, {v(fb)}")
    o.append(f"v_cvt_f32_u32 {v(fn)}, {v(vN)}")
    o.append(f"v_mul_f32 {v(bs)}, {v(af)}, {v(fb)}")

    def six(dst, step, base, k0):
        for j in range(4):
            o.append(fma_const(sn + j, step, k0 + j, base))
        for j in range(4):
            o.append(f"v_cos_f32 {v(cs + j)}, {v(sn + j)}")
            o.append(f"v_sin_f32 {v(sn + j)}, {v(sn + j)}")
        for j in range(2):
            o.append(f"v_cvt_pk_bf16_f32 {v(dst + 2 + j)}, {v(cs + 2 * j)}, {v(cs + 2 * j + 1)}")
            o.append(f"v_cvt_pk_bf16_f32 {v(dst + 4 + j)}, {v(sn + 2 * j)}, {v(sn + 2 * j + 1)}")
        for j in range(2):
            o.append(f"v_xor_b32 {v(dst + j)}, 0x80008000, {v(dst + 4 + j)}")

    for ks in range(4):
        six(C64 + 6 * ks, af, bs, 16 * ks)
    o.append(f"v_mul_f32 {v(af)}, {f32(1.0 / 32)}, {v(af)}")
    o.append(f"v_mul_f32 {v(bs)}, {f32(1.0 / 32)}, {v(bs)}")
    for i in range(8):
        o.append(fma_const(T1S + i, af, 16 * (i >> 2) + (i & 3), bs))
    for i in range(8):
        o.append(f"v_cos_f32 {v(T1C + i)}, {v(T1S + i)}")
        o.append(f"v_sin_f32 {v(T1S + i)}, {v(T1S + i)}")
    o.append(f"v_mul_f32 {v(af)}, {f32(1.0 / 32)}, {v(fn)}")
    o.append(f"v_mul_f32 {v(bs)}, {v(af)}, {v(fb)}")
    six(E32, af, bs, 0)
    o.append(f"v_and_b32 {v(lm)}, 1, {v(vN)}")
    o.append(f"v_mul_u32_u24 {v(lm)}, 0x8000, {v(lm)}")
    o.append(f"v_lshl_or_b32 {v(lm)}, {v(lm)}, 16, {v(lm)}")
    for j in range(6):
        o.append(f"v_xor_b32 {v(E32 + 6 + j)}, {v(lm)}, {v(E32 + j)}")
    for j in range(12):
        o.append(f"v_xor_b32 {v(E32 + 12 + j)}, 0x80000000, {v(E32 + j)}")
    o.append(f"v_cvt_f32_u32 {v(lm)}, {s(sT0)}")
    o.append(f"v_add_f32 {v(fb)}, {v(lm)}, {v(fb)}")
    for nt in range(2):
        if nt:
            o.append(f"v_add_f32 {v(fn)}, {f32(16.0)}, {v(fn)}")
        o.append(f"v_mul_f32 {v(af)}, {f32(1.0 / 2048)}, {v(fn)}")
        o.append(f"v_mul_f32 {v(bs)}, {v(af)}, {v(fb)}")
        for r in range(4):
            o.append(fma_const(T2S + 4 * nt + r, af, r, bs))
    for i in range(8):
        o.append(f"v_cos_f32 {v(T2C + i)}, {v(T2S + i)}")
        o.append(f"v_sin_f32 {v(T2S + i)}, {v(T2S + i)}")
    return o


def m_frags(t):
    mg = []
    df, bs, cs, sn = t, t + 2, t + 4, t + 8
    mg.append(f"s_lshl_b32 {s(sT0)}, {s(sJM)}, 6")
    mg.append(f"v_add_u32 {v(df)}, {s(sT0)}, {v(vM)}")
    mg.append(f"v_add_u32 {v(df + 1)}, 32, {v(df)}")
    mg.append(f"s_lshl_b32 {s(sT0)}, {s(sW)}, 5")
    mg.append(f"v_lshl_add_u32 {v(cs)}, {v(vH)}, 2, {s(sT0)}")
    mg.append(f"v_cvt_f32_u32 {v(cs)}, {v(cs)}")
    for dt in range(2):
        mg.append(f"v_cvt_f32_u32 {v(df + dt)}, {v(df + dt)}")
        mg.append(f"v_mul_f32 {v(df + dt)}, {f32(1.0 / 448)}, {v(df + dt)}")
        mg.append(f"v_mul_f32 {v(bs + dt)}, {v(df + dt)}, {v(cs)}")
    for i in range(4):
        for dt in range(2):
            for j in range(4):
                mg.append(fma_const(sn + j, df + dt, 8 * i + j, bs + dt))
            for j in range(4):
                mg.append(f"v_cos_f32 {v(cs + j)}, {v(sn + j)}")
                mg.append(f"v_sin_f32 {v(sn + j)}, {v(sn + j)}")
            for j in range(4):
                mg.append(f"v_cvt_pk_bf16_f32 {v(MF + (i * 2 + dt) * 4 + j)}, {v(cs + j)}, -{v(sn + j)}")
    return mg


def row_of_p(P, dst, p, tmp):
    P(f"v_bfe_u32 {v(dst)}, {v(p)}, 2, 4")
    P(f"v_bfe_u32 {v(tmp)}, {v(p)}, 8, 1")
    P(f"v_lshl_add_u32 {v(dst)}, {v(tmp)}, 4, {v(dst)}")
    P(f"v_and_b32 {v(tmp)}, 3, {v(p)}")
    P(f"v_lshl_add_u32 {v(dst)}, {v(tmp)}, 5, {v(dst)}")
    P(f"v_and_b32 {v(tmp)}, 0xc0, {v(p)}")
    P(f"v_lshl_add_u32 {v(dst)}, {v(tmp)}, 1, {v(dst)}")
    P(f"v_and_b32 {v(tmp)}, 0x600, {v(p)}")
    P(f"v_add_u32 {v(dst)}, {v(dst)}, {v(tmp)}")
    P(f"v_mul_u32_u24 {v(dst)}, 896, {v(dst)}")


class Filler:
    def __init__(self, G):
        self.G, self.q = G, []

    def add(self, items):
        self.q += items

    def emit(self, n):
        while n > 0 and self.q:
            it = self.q.pop(0)
            if callable(it):
                it()
            else:
                self.G(it)
            n -= 1

    def drain(self):
        self.emit(1 << 30)


def xslot(n):
    return [0, 16384, 32768, 73728][n & 3]


def aslot(n):
    return [49152, 57344, 65536, 90112][n & 3]


def bslot(n):
    return 98304 + n * 8192 if n < 4 else 73728 + (n - 4) * 8192


LAG = 7
LATE = {4: [[3, 4], [5, 6]], 5: [[2, 3], [4, 5, 6]], 6: [[1, 2], [3, 4], [5, 6]], 7: [[0, 1], [2, 3, 4], [5, 6]]}
YPRIO = 0
XBAR = 0
W2P = 0
LS = 128
sPO, sTG2 = 20, 92
SSLP = 2
XM1 = 100
WXA = 4
RFA = 4
P3PRIO = 0
LSLP = 1
TPRE = 3
XGAP = 20
PW2B = 0
PWS = 8
F1_T = 16
XC1 = 150
YM1 = 100
YM2 = 160
NX = 1
ASIG = 1
VSIG = 1
VCHK = 9
XPK = 4
YEARLY = 2
YW2 = 16
SLP = 4
SGS = 128
TOUCH = 21


def build():
    G = Gen()
    P = G
    vm, lg = G.vm, G.lg
    K = NAME + "_kernel"
    G.P.raw(f".globl {K}")
    G.P.raw(".p2align 8")
    G.P.raw(f".type {K},@function")
    G.P.raw(f"{K}:")
    P("s_cmp_ge_u32 s2, 256")
    P("s_cbranch_scc1 L_end")
    if STAMP:
        P("v_mov_b32 v31, 0")
        G.stamp(0, True)
        G.stamp(1)
    if "skew" in OPT:
        P("s_memrealtime s[98:99]")
    P("s_load_dwordx16 s[4:19], s[0:1], 0")
    P("s_load_dwordx2 s[26:27], s[0:1], 64")
    P("s_load_dwordx2 s[24:25], s[0:1], 80")
    if "nocp" not in OPT:
        P("s_cmp_lt_u32 s2, 224")
        P("s_cbranch_scc1 L_nocp")
        P(f"s_getpc_b64 {s(WR_, 2)}")
        P("L_pc:")
        P(f"s_mov_b32 {s(WR_ + 2)}, L_end-L_pc")
        P(f"s_mov_b32 {s(WR_ + 3)}, 0x00020000")
        P(f"s_sub_u32 {s(sT0)}, s2, 224")
        P(f"s_lshr_b32 {s(sT0)}, {s(sT0)}, 3")
        P(f"s_lshl_b32 {s(sT0)}, {s(sT0)}, 7")
        P(f"v_lshlrev_b32 {v(vT)}, 9, v0")
        P(f"buffer_load_dword {v(vEP)}, {v(vT)}, {s(WR_, 4)}, {s(sT0)} offen")
        P("L_nocp:")
    P(f"v_lshrrev_b32 {v(vT)}, 6, v0")
    P(f"v_and_b32 {v(vL)}, 63, v0")
    P(f"v_readfirstlane_b32 {s(sW)}, {v(vT)}")
    P(f"v_and_b32 {v(vM)}, 31, v0")
    P(f"v_lshrrev_b32 {v(vH)}, 5, {v(vL)}")
    P(f"v_and_b32 {v(vN)}, 15, v0")
    P(f"v_lshrrev_b32 {v(vG4)}, 4, {v(vL)}")
    P(f"v_lshlrev_b32 {v(vLA)}, 4, {v(vL)}")
    P(f"s_and_b32 {s(sXCD)}, s2, 7")
    P(f"s_lshr_b32 {s(sT0)}, s2, 3")
    P(f"s_mul_i32 {s(sJ7)}, {s(sT0)}, 37")
    P(f"s_lshr_b32 {s(sJ7)}, {s(sJ7)}, 8")
    P(f"s_mul_i32 {s(sJM)}, {s(sJ7)}, 7")
    P(f"s_sub_u32 {s(sJM)}, {s(sT0)}, {s(sJM)}")
    P(f"s_lshl_b32 {s(sRB64)}, {s(sXCD)}, 2")
    P(f"s_add_u32 {s(sRB64)}, {s(sRB64)}, {s(sJ7)}")
    P(f"s_lshr_b32 {s(sRB)}, {s(sXCD)}, 1")
    P(f"s_lshl_b32 {s(sRB)}, {s(sRB)}, 2")
    P(f"s_add_u32 {s(sRB)}, {s(sRB)}, {s(sJ7)}")
    P(f"s_and_b32 {s(sQ)}, {s(sXCD)}, 1")
    P(f"s_mul_i32 {s(sQ)}, {s(sQ)}, 7")
    P(f"s_add_u32 {s(sQ)}, {s(sQ)}, {s(sJM)}")
    P(f"s_and_b32 {s(sRG)}, {s(sW)}, 3")
    P(f"s_lshr_b32 {s(sCH)}, {s(sW)}, 2")
    P(f"s_lshl_b32 {s(sSG)}, {s(sRB)}, 2")
    P(f"s_add_u32 {s(sSG)}, {s(sSG)}, {s(sRG)}")
    P(f"s_lshl_b32 {s(sLX)}, {s(sRG)}, 12")
    P(f"s_lshl_b32 {s(sLA)}, {s(sRG)}, 11")
    P(f"s_xor_b32 {s(sT0)}, {s(sCH)}, 1")
    P(f"s_lshl_b32 {s(sLW)}, {s(sT0)}, 16")
    P(f"s_add_u32 {s(sLW)}, {s(sLW)}, {s(sLA)}")
    t0, t1, t2 = TMP, TMP + 1, TMP + 2
    XD4 = 176
    P(f"v_lshrrev_b32 {v(t0)}, 3, {v(vL)}")
    P(f"v_mul_u32_u24 {v(t2)}, 896, {v(t0)}")
    P(f"v_lshrrev_b32 {v(t1)}, 2, {v(vL)}")
    P(f"v_and_b32 {v(t1)}, 4, {v(t1)}")
    P(f"v_xor_b32 {v(t1)}, {v(t1)}, {v(vL)}")
    P(f"v_and_b32 {v(t1)}, 7, {v(t1)}")
    P(f"v_lshlrev_b32 {v(t1)}, 4, {v(t1)}")
    P(f"v_add_u32 {v(vWD)}, {v(t1)}, {v(t2)}")
    P(f"s_cmp_ge_u32 {s(sJ7)}, 4")
    P("s_cbranch_scc1 L_side")
    P(f"s_cmp_eq_u32 {s(sCH)}, 0")
    P("s_cbranch_scc1 L_x0")

    def stage(n):
        o = []

        def dx(n, r):
            P(f"s_add_u32 m0, {s(sLX)}, {xslot(n) + r * 1024}")
            P(f"buffer_load_dwordx4 {v(XD4 + r)}, {s(X_, 4)}, {s(sXO)} offen lds")
            if r == 3:
                P(f"s_add_u32 {s(sXO)}, {s(sXO)}, 128")
            vm.add(("st", n))

        def dw(n, base, so, i):
            P(f"s_add_u32 m0, {s(sLA)}, {base + i * 1024}")
            P(f"buffer_load_dwordx4 {v(vAD)}, {s(W1_, 4)}, {s(so)} offen lds")
            P(f"s_add_u32 {s(so)}, {s(so)}, {28672 if i == 0 else 7 * 28672}")
            vm.add(("st", n))

        if n < 7:
            o += [lambda r=r: dx(n, r) for r in range(4)]
            o += [lambda i=i: dw(n, aslot(n), sAO, i) for i in range(2)]
            bs = [n - LAG] if n >= LAG else []
        else:
            bs = LATE[LAG][n - 7]
        for b in bs:
            o += [lambda i=i, b=b: dw(n, bslot(b), sBO, i) for i in range(2)]
        return o

    NSTG = 7 + len(LATE[LAG])

    def run(items):
        for it in items:
            if callable(it):
                it()
            else:
                P(it)

    P(f"v_lshl_add_u32 {v(vAD)}, {v(t2)}, 2, {v(t1)}")
    P(f"v_and_b32 {v(t1)}, 4, {v(t0)}")
    P(f"v_xor_b32 {v(t1)}, {v(t1)}, {v(vL)}")
    P(f"v_and_b32 {v(t1)}, 7, {v(t1)}")
    P(f"v_lshl_add_u32 {v(XD4)}, {v(t1)}, 4, {v(t2)}")
    for r in range(1, 4):
        P(f"v_xor_b32 {v(XD4 + r)}, {r * 16}, {v(XD4)}")
        P(f"v_add_u32 {v(XD4 + r)}, {r * 28672}, {v(XD4 + r)}")
    P(f"s_and_b32 {s(sT0)}, {s(sSG)}, 1")
    P(f"s_lshl_b32 {s(sXO)}, {s(sT0)}, 3")
    P(f"s_and_b32 {s(sT0)}, {s(sSG)}, 8")
    P(f"s_lshl_b32 {s(sT0)}, {s(sT0)}, 1")
    P(f"s_add_u32 {s(sXO)}, {s(sXO)}, {s(sT0)}")
    P(f"s_and_b32 {s(sT0)}, {s(sSG)}, 6")
    P(f"s_lshl_b32 {s(sT0)}, {s(sT0)}, 6")
    P(f"s_add_u32 {s(sXO)}, {s(sXO)}, {s(sT0)}")
    P(f"s_and_b32 {s(sT0)}, {s(sSG)}, 48")
    P(f"s_lshl_b32 {s(sT0)}, {s(sT0)}, 5")
    P(f"s_add_u32 {s(sXO)}, {s(sXO)}, {s(sT0)}")
    P(f"s_mul_i32 {s(sXO)}, {s(sXO)}, 896")
    P(f"s_lshl_b32 {s(sAO)}, {s(sQ)}, 8")
    P(f"s_mul_i32 {s(sT0)}, {s(sRG)}, {2 * 28672}")
    P(f"s_add_u32 {s(sAO)}, {s(sAO)}, {s(sT0)}")
    P(f"s_add_u32 {s(sBO)}, {s(sAO)}, 128")
    P(f"s_mov_b32 {s(X_ + 2)}, {S_ * D_ * 2}")
    P(f"s_mov_b32 {s(X_ + 3)}, 0x00020000")
    P(f"s_mov_b32 {s(W1_ + 2)}, {D_ * F_ * 2}")
    P(f"s_mov_b32 {s(W1_ + 3)}, 0x00020000")
    P("s_waitcnt lgkmcnt(0)")
    G.stamp(2)
    P(f"s_mov_b64 {s(X_, 2)}, s[4:5]")
    P(f"s_mov_b64 {s(W1_, 2)}, s[12:13]")
    for n in range(2):
        run(stage(n))
    P("s_branch L_y1")
    y_vm = {k: list(q) for k, q in vm.q.items()}

    def issue_w2(st, half, lw=sLW, wo=sWO, tag="w2"):
        P(f"s_add_u32 m0, {s(lw)}, {(st & 7) * 8192 + half * 1024}")
        P(f"buffer_load_dwordx4 {v(vWD)}, {s(W2_, 4)}, {s(wo)} offen lds")
        if half == 0 or st & 1 == 0:
            P(f"s_add_u32 {s(wo)}, {s(wo)}, {8 * 896}")
        else:
            P(f"s_add_u32 {s(wo)}, {s(wo)}, {s(sI1 if st & 3 == 1 else sI3)}")
        vm.add((tag, st))

    BA, BO = TMP + 16, TMP + 20

    def ptr_setup():
        G.srd(B1_, 14, F_ * 2)
        P(f"v_lshlrev_b32 {v(vT)}, 1, {v(vL)}")
        P(f"s_lshl_b32 {s(sT0)}, {s(sQ)}, 8")
        P(f"s_lshl_b32 {s(sT1)}, {s(sCH)}, 7")
        P(f"s_add_u32 {s(sT0)}, {s(sT0)}, {s(sT1)}")
        P(f"buffer_load_ushort {v(BA)}, {v(vT)}, {s(B1_, 4)}, {s(sT0)} offen")
        vm.add("bias")
        G.srd(WS_, 24, WS_END)
        P("s_mov_b64 exec, 1")
        P(f"buffer_load_dword {v(vEP)}, {v(vLA)}, {s(WS_, 4)}, 0 offen")
        P("s_mov_b64 exec, -1")
        vm.add("ep")
        G.srd(W2_, 16, F_ * D_ * 2)
        G.srd(OUT_, 26, S_ * D_ * 2)
        G.srd(V_, 24, 225 * 8192, WS_V)

    def w2_setup():
        o = []
        o.append(f"s_mul_i32 {s(sCNT)}, {s(sRG)}, 14")
        o.append(f"s_lshr_b32 {s(sT1)}, {s(sCNT)}, 2")
        o.append(f"s_lshl_b32 {s(sT1)}, {s(sT1)}, 7")
        o.append(f"s_and_b32 {s(sCNT)}, {s(sCNT)}, 3")
        o.append(f"s_lshl_b32 {s(sT2)}, {s(sCNT)}, 4")
        o.append(f"s_add_u32 {s(sT1)}, {s(sT1)}, {s(sT2)}")
        o.append(f"s_xor_b32 {s(sT2)}, {s(sCH)}, 1")
        o.append(f"s_lshl_b32 {s(sT2)}, {s(sT2)}, 6")
        o.append(f"s_add_u32 {s(sT1)}, {s(sT1)}, {s(sT2)}")
        o.append(f"s_mul_i32 {s(sWO)}, {s(sT1)}, 896")
        o.append(f"s_lshl_b32 {s(sT1)}, {s(sJM)}, 7")
        o.append(f"s_add_u32 {s(sWO)}, {s(sWO)}, {s(sT1)}")
        o.append(f"s_mul_i32 {s(sI1)}, {s(sCNT)}, {32 * 896}")
        o.append(f"s_sub_u32 {s(sI3)}, {72 * 896}, {s(sI1)}")
        o.append(f"s_add_u32 {s(sI1)}, {s(sI1)}, {8 * 896}")
        return o

    def rd_setup():
        P(f"v_bfe_u32 {v(t0)}, {v(vL)}, 2, 2")
        P(f"v_lshlrev_b32 {v(t1)}, 7, {v(t0)}")
        P(f"v_and_b32 {v(t2)}, 2, {v(t0)}")
        P(f"v_lshl_add_u32 {v(t1)}, {v(t2)}, 5, {v(t1)}")
        P(f"v_and_b32 {v(t2)}, 16, {v(vL)}")
        P(f"v_lshl_add_u32 {v(t1)}, {v(t2)}, 1, {v(t1)}")
        P(f"v_and_b32 {v(t0)}, 3, {v(vL)}")
        P(f"v_lshl_add_u32 {v(t1)}, {v(t0)}, 3, {v(t1)}")
        P(f"v_lshl_add_u32 {v(vTA)}, {v(vH)}, 10, {v(t1)}")
        P(f"s_mul_i32 {s(sT0)}, {s(sCH)}, {73728 - 49152}")
        P(f"s_add_u32 {s(sT0)}, {s(sT0)}, 49152")
        P(f"v_add_u32 {v(vTA)}, {s(sT0)}, {v(vTA)}")
        P(f"v_xor_b32 {v(vTA + 1)}, 64, {v(vTA)}")
        P(f"v_lshl_add_u32 {v(vTW)}, {v(vH)}, 9, {v(t1)}")
        P(f"v_add_u32 {v(vTW)}, {s(sLW)}, {v(vTW)}")
        P(f"v_xor_b32 {v(vTW + 1)}, 64, {v(vTW)}")
        P(f"v_bfe_u32 {v(t1)}, {v(vL)}, 2, 3")
        P(f"v_and_b32 {v(t2)}, 4, {v(t1)}")
        P(f"v_xor_b32 {v(t2)}, {v(t2)}, {v(t0)}")
        P(f"v_xor_b32 {v(t2)}, {v(t2)}, {v(vH)}")
        P(f"v_lshlrev_b32 {v(t2)}, 4, {v(t2)}")
        P(f"v_lshl_add_u32 {v(t2)}, {v(t1)}, 7, {v(t2)}")
        P(f"v_lshl_add_u32 {v(t2)}, {v(t0)}, 10, {v(t2)}")
        P(f"v_add_u32 {v(vXR)}, {s(sLX)}, {v(t2)}")
        for j in range(1, 4):
            P(f"v_xor_b32 {v(vXR + j)}, {32 * j}, {v(vXR)}")

    def late_setup():
        o = []
        for j in range(1, 4):
            o.append(f"v_mov_b32 {v(BA + j)}, 0")
            o.append(f"v_mov_b32 {v(BO + j)}, 0")
            o.append(f"v_mov_b32 {v(BO + 4 + j)}, 0")
        o.append(f"v_mul_u32_u24 {v(BO + 4)}, 0x3f80, {v(vH)}")
        o.append(f"v_sub_u32 {v(BO)}, 0x3f80, {v(BO + 4)}")
        o.append(f"s_mov_b32 {s(sC0)}, {f32(-LOG2E)}")
        o.append(f"s_mov_b32 {s(sC0 + 1)}, {f32(-LOG2E)}")
        o.append(f"s_mul_i32 {s(sA0)}, {s(sSG)}, {SGS}")
        o.append(f"s_mul_i32 {s(sT1)}, {s(sCH)}, 56")
        o.append(f"s_add_u32 {s(sA0)}, {s(sA0)}, {s(sT1)}")
        o.append(f"s_lshl_b32 {s(sT1)}, {s(sQ)}, 2")
        o.append(f"s_add_u32 {s(sA0)}, {s(sA0)}, {s(sT1)}")
        o.append(f"s_lshl_b32 {s(sA0)}, {s(sA0)}, 10")
        o.append(f"s_add_u32 {s(sA0)}, {s(sA0)}, {WS_ACT}")
        o.append(f"s_and_b32 {s(sFL)}, {s(sSG)}, 62")
        o.append(f"s_add_u32 {s(sFL)}, {s(sFL)}, {s(sCH)}")
        o.append(f"s_mul_i32 {s(sFL)}, {s(sFL)}, {LS // 8}")
        o.append(f"s_add_u32 {s(sFL)}, {s(sFL)}, {s(sQ)}")
        o.append(f"s_lshl_b32 {s(sFL)}, {s(sFL)}, 1")
        o.append(f"s_and_b32 {s(sT1)}, {s(sSG)}, 1")
        o.append(f"s_add_u32 {s(sFL)}, {s(sFL)}, {s(sT1)}")
        o.append(f"s_lshl_b32 {s(sFL)}, {s(sFL)}, 2")
        o.append(f"s_add_u32 {s(sFL)}, {s(sFL)}, {WS_F3}")
        return o + w2_setup()

    def tag_ready():
        G.wvm("ep")
        P(f"v_readfirstlane_b32 {s(sTAG)}, {v(vEP)}")
        P(f"s_mul_i32 {s(sTAG)}, {s(sTAG)}, 1664525")
        P(f"s_add_u32 {s(sTAG)}, {s(sTAG)}, 1013904223"); P(f"s_mov_b32 {s(sTG2)}, {s(sTAG)}"); P(f"s_mov_b32 {s(sTG2 + 1)}, {s(sTAG)}")

    def xwin(n):
        if n == 3:
            for j in range(4):
                P(f"v_add_u32 {v(vXR + j)}, 0x10000, {v(vXR + j)}")
        if n == 4:
            for j in range(4):
                P(f"v_subrev_u32 {v(vXR + j)}, 0x10000, {v(vXR + j)}")

    def bias_mfma(init):
        for dt in range(2):
            d = v(ACC + 16 * dt, 16)
            P(f"v_mfma_f32_32x32x16_bf16 {d}, {v(BA, 4)}, {v(BO + 4 * dt, 4)}, {'0' if init else d}")

    def mish(fs, pk=True):
        h = ACC + 8 * fs
        u = TMP + (fs & 1) * 16
        dn = u + 8
        o = []
        if pk:
            o += [f"v_pk_fma_f32 {v(u + 2 * i, 2)}, {v(h + 2 * i, 2)}, {s(sC0, 2)}, 1.0 op_sel_hi:[1,1,0]" for i in range(4)]
            o += [f"v_exp_f32 {v(u + i)}, {v(u + i)}" for i in range(8)]
            o += [f"v_pk_add_f32 {v(u + 2 * i, 2)}, {v(u + 2 * i, 2)}, 1.0 op_sel_hi:[1,0]" for i in range(4)]
            o += [f"v_pk_fma_f32 {v(dn + 2 * i, 2)}, {v(u + 2 * i, 2)}, {v(u + 2 * i, 2)}, 1.0 op_sel_hi:[1,1,0]" for i in range(4)]
            o += [f"v_rcp_f32 {v(dn + i)}, {v(dn + i)}" for i in range(8)]
            o += [f"v_pk_mul_f32 {v(u + 2 * i, 2)}, {v(u + 2 * i, 2)}, {v(dn + 2 * i, 2)} clamp" for i in range(4)]
            o += [f"v_pk_mul_f32 {v(u + 2 * i, 2)}, {v(u + 2 * i, 2)}, {v(h + 2 * i, 2)}" for i in range(4)]
        else:
            o += [f"v_fma_f32 {v(u + i)}, {v(h + i)}, {s(sC0)}, 1.0" for i in range(8)]
            o += [f"v_exp_f32 {v(u + i)}, {v(u + i)}" for i in range(8)]
            o += [f"v_add_f32 {v(u + i)}, 1.0, {v(u + i)}" for i in range(8)]
            o += [f"v_fma_f32 {v(dn + i)}, {v(u + i)}, {v(u + i)}, 1.0" for i in range(8)]
            o += [f"v_rcp_f32 {v(dn + i)}, {v(dn + i)}" for i in range(8)]
            o += [f"v_mul_f32 {v(u + i)}, {v(u + i)}, {v(dn + i)} clamp" for i in range(8)]
            o += [f"v_mul_f32 {v(u + i)}, {v(u + i)}, {v(h + i)}" for i in range(8)]
        o += [f"v_cvt_pk_bf16_f32 {v(h + i)}, {v(u + 2 * i)}, {v(u + 2 * i + 1)}" for i in range(4)]

        def st():
            if "tinyact" in OPT:
                P("s_mov_b64 exec, 0xff")
            P(f"buffer_store_dwordx4 {v(h, 4)}, {v(vLA)}, {s(WS_, 4)}, {s(sA0)} offen offset:{fs * 1024} sc1")
            if "tinyact" in OPT:
                P("s_mov_b64 exec, -1")
            vm.add("act")

        o.append(st)
        return o

    def f3_addr():
        P(f"s_lshl_b32 {s(sPO)}, {s(sRB64)}, 1")
        P(f"s_xor_b32 {s(sT1)}, {s(sCH)}, 1")
        P(f"s_add_u32 {s(sPO)}, {s(sPO)}, {s(sT1)}")
        P(f"s_mul_i32 {s(sPO)}, {s(sPO)}, {LS // 8}")
        P(f"s_mul_i32 {s(sT1)}, {s(sRG)}, 7")
        P(f"s_lshr_b32 {s(sT1)}, {s(sT1)}, 1")
        P(f"s_add_u32 {s(sPO)}, {s(sPO)}, {s(sT1)}")
        P(f"s_lshl_b32 {s(sPO)}, {s(sPO)}, 3")
        P(f"s_add_u32 {s(sPO)}, {s(sPO)}, {WS_F3}")

    def f1_addr():
        P(f"s_cmp_eq_u32 {s(sK)}, 224")
        P(f"s_cselect_b32 {s(sPO)}, 0, {s(sK)}")
        P(f"s_lshr_b32 {s(sPO)}, {s(sPO)}, 4")
        P(f"s_lshl_b32 {s(sPO)}, {s(sPO)}, 2")
        P(f"s_add_u32 {s(sPO)}, {s(sPO)}, {s(sW)}")
        P(f"s_mul_i32 {s(sPO)}, {s(sPO)}, {LS}")
        P(f"s_add_u32 {s(sPO)}, {s(sPO)}, {WS_F1}")
        P(f"v_lshlrev_b32 {v(vPA)}, 4, {v(vM)}")
        P(f"v_add_u32 {v(vPA)}, {WS_F2}, {v(vPA)}")

    AC3, AR, WF, VF = 64, 0, 32, 48
    NST = 14
    FL = Filler(G)

    def act_base():
        P(f"s_xor_b32 {s(sT0)}, {s(sCH)}, 1")
        P(f"s_mul_i32 {s(sA0)}, {s(sRB64)}, {2 * SGS}")
        P(f"s_mul_i32 {s(sT1)}, {s(sRG)}, 14")
        P(f"s_add_u32 {s(sA0)}, {s(sA0)}, {s(sT1)}")
        P(f"s_mul_i32 {s(sT1)}, {s(sT0)}, 56")
        P(f"s_add_u32 {s(sA0)}, {s(sA0)}, {s(sT1)}")
        P(f"s_lshl_b32 {s(sA0)}, {s(sA0)}, 10")
        P(f"s_add_u32 {s(sA0)}, {s(sA0)}, {WS_ACT}")
        P(f"s_add_u32 {s(sA1)}, {s(sA0)}, {SGS * 1024}")

    def issue_act(st):
        sl = st % 4
        for nt, so in ((0, sA0), (1, sA1)):
            P(f"buffer_load_dwordx4 {a(AR + sl * 8 + 4 * nt, 4)}, {v(vLA)}, {s(WS_, 4)}, {s(so)} offen offset:{(st % 4) * 1024} sc1")
        if st % 4 == 3:
            P(f"s_add_u32 {s(sA0)}, {s(sA0)}, 4096")
            P(f"s_add_u32 {s(sA1)}, {s(sA1)}, 4096")
        vm.add(("act", st), 2)

    def w2r(st, o, n):
        return a(32 + 8 * (st - 2) + o, n) if 2 <= st < 6 else v(WF + (st & 1) * 8 + o, n)

    def rd_w2(st):
        off = (st & 7) * 8192
        for dt in range(2):
            P(f"ds_read_b64_tr_b16 {w2r(st, 4 * dt, 2)}, {v(vTW + dt)} offset:{off}")
            P(f"ds_read_b64_tr_b16 {w2r(st, 4 * dt + 2, 2)}, {v(vTW + dt)} offset:{off + 1024}")
        lg.add(("w2", st), 4)

    def w2_preload():
        for st in range(6):
            rd_w2(st)
        for st in range(6):
            G.wlg(("w2", st))
            issue_w2(st + 8, 0)
            issue_w2(st + 8, 1)
        lg.clear()

    def ffn_loop(after=None, nfill=5, lo=0, hi=NST):
        for st in range(lo, hi):
            if 6 <= st + 1 < NST:
                rd_w2(st + 1)
            w = f" lgkmcnt({lg.n(('w2', st))})" if st >= 6 else ""
            P(f"s_waitcnt vmcnt({vm.n(('act', st))}){w}")
            if "ffnst" in OPT:
                G.stamp(33 + st)
            sl = st % 4
            for dt in range(2):
                for nt in range(2):
                    d = v(AC3 + (dt * 2 + nt) * 16, 16)
                    c = "0" if st == 0 else d
                    P(f"v_mfma_f32_32x32x16_bf16 {d}, {w2r(st, 4 * dt, 4)}, {a(AR + sl * 8 + 4 * nt, 4)}, {c}")
                    FL.emit(nfill)
            if st + DEPTH < NST:
                issue_act(st + DEPTH)
            if after:
                after(st)
        if hi == NST:
            FL.drain()

    oa, gr, ra = vXR, vXR + 3, vTA

    def red_setup():
        t_ = vXR + 1
        P(f"s_lshl_b32 {s(sT1)}, {s(sRB64)}, 6")
        P(f"s_lshl_b32 {s(sT0)}, {s(sW)}, 3")
        P(f"s_add_u32 {s(sT0)}, {s(sT0)}, {s(sT1)}")
        P(f"v_lshrrev_b32 {v(t_)}, 3, {v(vL)}")
        P(f"v_add_u32 {v(t_)}, {s(sT0)}, {v(t_)}")
        row_of_p(P, oa, t_, t_ + 1)
        P(f"v_and_b32 {v(t_ + 1)}, 7, {v(vL)}")
        P(f"v_lshl_add_u32 {v(oa)}, {v(t_ + 1)}, 4, {v(oa)}")
        P(f"v_and_b32 {v(ra + 1)}, 3, {v(vL)}")
        P(f"v_and_b32 {v(ra)}, 31, {v(t_)}")
        P(f"v_lshlrev_b32 {v(ra + 1)}, 2, {v(ra + 1)}")
        P(f"v_xor_b32 {v(ra)}, {v(ra)}, {v(ra + 1)}")
        P(f"v_lshlrev_b32 {v(ra)}, 4, {v(ra)}")
        P(f"v_and_b32 {v(ra + 1)}, 1, {v(vL)}")
        P(f"v_lshl_add_u32 {v(ra)}, {v(ra + 1)}, 10, {v(ra)}")
        P(f"v_and_b32 {v(ra + 1)}, 2, {v(vL)}")
        P(f"v_lshl_add_u32 {v(ra)}, {v(ra + 1)}, 12, {v(ra)}")
        P(f"v_and_b32 {v(ra + 1)}, 4, {v(vL)}")
        P(f"v_lshl_add_u32 {v(ra)}, {v(ra + 1)}, 13, {v(ra)}")
        P(f"s_lshl_b32 {s(sT0)}, {s(sCH)}, 14")
        P(f"v_add_u32 {v(ra)}, {s(sT0)}, {v(ra)}")
        P(f"v_add_u32 {v(ra + 1)}, 0x10000, {v(ra)}")

    def xreg(t):
        return a(4 * t, 4) if t < 16 else v(128 + 4 * (t - 16), 4)

    def rdx(n):
        xwin(n)
        for j in range(4):
            P(f"ds_read_b128 {xreg(4 * n + j)}, {v(vXR + j)} offset:{xslot(n) & 0xFFFF}")
            lg.add(("x", 4 * n + j))

    def yw(t):
        return 96 + 8 * (t % 3)

    def w1_rd(t, dt):
        b = yw(t) + 4 * dt
        off = bslot(t >> 2) - 73728 + (t & 3) * 2048
        P(f"ds_read_b64_tr_b16 {v(b, 2)}, {v(vTA + dt)} offset:{off}")
        P(f"ds_read_b64_tr_b16 {v(b + 2, 2)}, {v(vTA + dt)} offset:{off + 512}")
        lg.add(("b", t, dt), 2)

    P("L_x0:")
    vm.clear()
    lg.clear()
    rd_setup()
    kf, ph, d0, ta, c2 = TMP, TMP + 1, TMP + 2, TMP + 3, TMP + 28
    an = TMP + 4
    P(f"v_mov_b32 {v(an)}, 0")
    P(f"v_lshlrev_b32 {v(ta)}, 2, {v(vL)}")
    P(f"v_add_u32 {v(ta)}, {L_SY}, {v(ta)}")
    P(f"ds_write_b32 {v(ta)}, {v(an)}")
    P(f"s_lshl_b32 {s(sT0)}, {s(sQ)}, 4")
    P(f"v_add_u32 {v(kf)}, {s(sT0)}, {v(vN)}")
    P(f"v_and_b32 {v(ph)}, 16, {v(vL)}")
    P(f"v_lshl_add_u32 {v(d0)}, {v(kf)}, 5, {v(ph)}")
    P(f"v_cmp_eq_u32 {s(sM, 2)}, 16, {v(d0)}")
    P(f"v_cvt_f32_u32 {v(kf)}, {v(kf)}")
    P(f"v_mul_f32 {v(kf)}, {f32(1.0 / 448)}, {v(kf)}")
    P(f"v_cvt_f32_u32 {v(ph)}, {v(ph)}")
    P(f"v_mul_f32 {v(ph)}, {f32(1.0 / 64)}, {v(ph)}")
    P(f"v_cndmask_b32 {v(kf)}, {v(kf)}, 0.5, {s(sM, 2)}")
    P(f"v_cndmask_b32 {v(ph)}, {v(ph)}, 0, {s(sM, 2)}")
    P(f"s_lshl_b32 {s(sT0)}, {s(sW)}, 4")
    P(f"v_lshl_add_u32 {v(d0)}, {v(vH)}, 3, {s(sT0)}")
    P(f"v_cvt_f32_u32 {v(d0)}, {v(d0)}")
    P(f"v_fma_f32 {v(ph)}, {v(d0)}, {v(kf)}, {v(ph)}")
    P(f"v_cos_f32 {v(c2)}, {v(kf)}")
    P(f"v_add_u32 {v(vTT)}, {L_TAB}, {v(vLA)}")
    P(f"s_lshl_b32 {s(sT0)}, {s(sW)}, 10")
    P(f"v_add_u32 {v(ta)}, {s(sT0)}, {v(vTT)}")
    P(f"v_add_f32 {v(c2)}, {v(c2)}, {v(c2)}")
    def tab(i):
        o_ = []
        for j in (3, 4):
            o_.append(fma_const(an + j, kf, 64 * i + j, ph))
        for j in (3, 4):
            o_.append(f"v_cos_f32 {v(an + j)}, {v(an + j)}")
        for j in range(3):
            o_.append(f"v_fma_f32 {v(an + 5 + j)}, {v(c2)}, {v(an + 4 + j)}, -{v(an + 3 + j)}")
            o_.append(f"v_fma_f32 {v(an + 2 - j)}, {v(c2)}, {v(an + 3 - j)}, -{v(an + 4 - j)}")
        o = TMP + 12 if i & 1 else 188
        for j in range(4):
            o_.append(f"v_cvt_pk_bf16_f32 {v(o + j)}, {v(an + 2 * j)}, {v(an + 2 * j + 1)}")

        def w():
            P(f"ds_write_b128 {v(ta)}, {v(o, 4)} offset:{i * 4096}")
            lg.add("tw")

        o_.append(w)
        return o_

    for i in range(TPRE):
        run(tab(i))
    P("s_waitcnt lgkmcnt(0)")
    G.stamp(2)
    ptr_setup()
    run(late_setup())
    G.stamp(3)
    for i in range(TPRE, 7):
        FL.add(tab(i))
    FL.add(p2_consts(TMP))
    xa = vB
    xm = []
    xm.append(f"v_mul_u32_u24 {v(xa)}, 144, {v(vN)}")
    xm.append(f"s_mul_i32 {s(sT2)}, {s(sW)}, 2304")
    xm.append(f"s_add_u32 {s(sT2)}, {s(sT2)}, {L_XT}")
    xm.append(f"v_add_u32 {v(xa)}, {s(sT2)}, {v(xa)}")
    xm.append(f"v_lshl_add_u32 {v(xa)}, {v(vH)}, 4, {v(xa)}")
    xm.append(f"v_and_b32 {v(xa + 1)}, 16, {v(vL)}")
    xm.append(f"v_lshl_add_u32 {v(xa)}, {v(xa + 1)}, 1, {v(xa)}")
    xm.append(f"v_lshrrev_b32 {v(TMP)}, 3, {v(vL)}")
    xm.append(f"v_and_b32 {v(TMP + 1)}, 7, {v(vL)}")
    xm.append(f"v_lshlrev_b32 {v(TMP + 1)}, 4, {v(TMP + 1)}")
    xm.append(f"v_mul_u32_u24 {v(xa + 1)}, 144, {v(TMP)}")
    xm.append(f"v_add3_u32 {v(xa + 1)}, {v(xa + 1)}, {v(TMP + 1)}, {s(sT2)}")
    xm.append(f"v_lshl_add_u32 {v(vT)}, {v(TMP)}, 13, {v(TMP + 1)}")
    xm.append(f"s_mov_b32 {s(sK)}, s2")
    xm.append(f1_addr)
    xm.append(f"s_lshl_b32 {s(sXO)}, {s(sQ)}, 17")
    xm.append(f"s_lshl_b32 {s(sT1)}, {s(sSG)}, 7")
    xm.append(f"s_add_u32 {s(sXO)}, {s(sXO)}, {s(sT1)}")
    xm.append(f"s_add_u32 {s(sXO)}, {s(sXO)}, {WS_XD}")
    xm.append(f"s_add_u32 {s(sAO)}, {s(sXO)}, {8 * 8192}")
    xm.append(f"s_lshl_b32 {s(sBO)}, {s(sQ)}, 2")
    xm.append(f"s_lshr_b32 {s(sT1)}, {s(sSG)}, 4")
    xm.append(f"s_add_u32 {s(sBO)}, {s(sBO)}, {s(sT1)}")
    xm.append(f"s_mul_i32 {s(sBO)}, {s(sBO)}, {LS // 4}")
    xm.append(f"s_and_b32 {s(sT1)}, {s(sSG)}, 15")
    xm.append(f"s_add_u32 {s(sBO)}, {s(sBO)}, {s(sT1)}")
    xm.append(f"s_lshl_b32 {s(sBO)}, {s(sBO)}, 2")
    xm.append(f"s_add_u32 {s(sBO)}, {s(sBO)}, {WS_F1}")
    FL.add(xm)
    FL.emit(PRE_CONST)
    G.stamp(4)
    AX, AW, AT = 0, 8, 24

    def x_rd(t, part):
        n = t >> 2
        if part == 0:
            if t & 3 == 0:
                xwin(n)
            P(f"ds_read_b128 {a(AX + (t & 1) * 4, 4)}, {v(vXR + (t & 3))} offset:{xslot(n) & 0xFFFF}")
            lg.add(("r", t, 0))
        if part < 2:
            b = AW + (t & 1) * 8 + 4 * part
            off = aslot(n) - 49152 + (t & 3) * 2048
            P(f"ds_read_b64_tr_b16 {a(b, 2)}, {v(vTA + part)} offset:{off}")
            P(f"ds_read_b64_tr_b16 {a(b + 2, 2)}, {v(vTA + part)} offset:{off + 512}")
            lg.add(("r", t, part), 2)
        else:
            P(f"ds_read_b128 {a(AT + (t & 1) * 4, 4)}, {v(vTT)} offset:{t * 1024}")
            lg.add(("r", t, 2))

    P("s_waitcnt lgkmcnt(0)")
    P("s_barrier")
    G.stamp(5)
    for part in range(3):
        x_rd(0, part)
    for t in range(28):
        if t & 3 == 3:
            if t < 24:
                FL.emit(XGAP)
            P("s_waitcnt lgkmcnt(0)")
            P("s_barrier")
        if t == 14 and "skew" in OPT:
            P(f"v_mov_b32 {v(vSG)}, s98")
            P(f"s_lshl_b32 {s(sCNT)}, s2, 2")
            P(f"s_add_u32 {s(sCNT)}, {s(sCNT)}, 0x70000")
            P("s_mov_b64 exec, 1")
            P(f"buffer_store_dword {v(vSG)}, {v(vLA)}, {s(WS_, 4)}, {s(sCNT)} offen sc1")
            P("s_mov_b64 exec, -1")
            vm.add("sk")
        if t == 14:
            tag_ready()
            bias_mfma(False)
        xf = a(AX + (t & 1) * 4, 4)
        for part in ((2, 0, 1) if t == 27 else (0, 1, 2)):
            G.wlg(("r", t, part), ("r", t, 0))
            if part < 2:
                d = v(ACC + 16 * part, 16)
                P(f"v_mfma_f32_32x32x16_bf16 {d}, {a(AW + (t & 1) * 8 + 4 * part, 4)}, {xf}, {'0' if t == 0 else d}")
            else:
                c = "0" if t == 0 else v(DACC, 16)
                P(f"v_mfma_f32_32x32x16_bf16 {v(DACC, 16)}, {xf}, {a(AT + (t & 1) * 4, 4)}, {c}")
            if t + 1 < 28:
                x_rd(t + 1, part)
            if t < 23:
                FL.emit(XFILL)
        if t == 22:
            FL.drain()
    lg.clear()
    G.stamp(7)
    for i in range(8):
        P(f"v_cvt_pk_bf16_f32 {v(DACC + i)}, {v(DACC + 2 * i)}, {v(DACC + 2 * i + 1)}")
    for pr in range(2):
        o = DACC + 4 * pr
        P(f"v_permlane16_swap_b32 {v(o)}, {v(o + 2)}")
        P(f"v_permlane16_swap_b32 {v(o + 1)}, {v(o + 3)}")
        P(f"ds_write_b128 {v(xa)}, {v(o, 4)} offset:{64 * pr}")
    for pr in range(2):
        P(f"ds_read_b128 {v(DACC + 8 + 4 * pr, 4)}, {v(xa + 1)} offset:{pr * 8 * 144}")
    m0_ = mish(0, pk=False)
    run(m0_[:24])
    for pr in range(2):
        P(f"s_waitcnt lgkmcnt({1 - pr})")
        P(f"buffer_store_dwordx4 {v(DACC + 8 + 4 * pr, 4)}, {v(vT)}, {s(WS_, 4)}, {s(sAO if pr else sXO)} offen sc1")
        vm.add("xd")
    run(m0_[24:])
    G.stamp(17)
    for fs in range(1, 4):
        run(mish(fs, pk=(fs >= XPK)))
        if fs == 2:
            G.poll_issue()
        if fs == F1_AT:
            G.stamp(19)
            G.wvm("xd")
            G.signal(s(sBO))
            G.stamp(20)
    G.stamp(8)
    G.sp_issue(16)
    red_setup()

    P("L_p2:")
    XF, DR, DI, B2, WD, GG, WR, WI = 0, 64, 72, 80, 104, 96, TMP + 16, TMP + 24

    def xsig():
        L = G.label("L_ns")
        P(f"s_cmp_ge_u32 {s(sJ7)}, 4")
        P(f"s_cbranch_scc1 {L}")
        G.signal(s(sFL), g="")
        P(f"{L}:")

    G.poll_check(slow=xsig)
    P(f"s_lshl_b32 {s(sT1)}, {s(sW)}, 11")
    P(f"s_lshl_b32 {s(sT0)}, {s(sK)}, 13")
    P(f"s_add_u32 {s(sBO)}, {s(sT0)}, {s(sT1)}")
    P(f"s_add_u32 {s(sT0)}, {s(sBO)}, {WS_WT}")
    P(f"s_add_u32 {s(sT2)}, {s(sT1)}, {WS_G}")
    for mt in range(2):
        P(f"buffer_load_dwordx4 {v(WD + 4 * mt, 4)}, {v(vLA)}, {s(WS_, 4)}, {s(sT0)} offen offset:{mt * 1024} sc1")
    for nt in range(2):
        P(f"buffer_load_dwordx4 {v(GG + 4 * nt, 4)}, {v(vLA)}, {s(WS_, 4)}, {s(sT2)} offen offset:{nt * 1024} sc1")
    vm.add("wd", 2)
    vm.add("gg", 2)
    P(f"s_cmp_eq_u32 {s(sK)}, 224")
    P(f"s_cselect_b32 {s(sT2)}, 0, {s(sK)}")
    P(f"s_lshl_b32 {s(sT2)}, {s(sT2)}, 13")
    P(f"s_add_u32 {s(sT2)}, {s(sT2)}, {s(sT1)}")
    P(f"s_add_u32 {s(sT2)}, {s(sT2)}, {WS_XD}")
    P(f"s_add_u32 m0, {s(sT1)}, {L_XS}")

    def xs_issue():
        for mt in range(2):
            P(f"buffer_load_dwordx4 {v(vLA)}, {s(WS_, 4)}, {s(sT2)} offen offset:{mt * 1024} sc1 lds")

    G.sp_test(16)
    P("s_cbranch_scc1 L_f1slow")
    xs_issue()
    G.stamp(9)
    P(f"s_cmp_ge_u32 {s(sJ7)}, 4")
    P("s_cbranch_scc1 L_f1w")
    P("s_waitcnt vmcnt(6)")
    G.signal(s(sFL), g="")
    G.stamp(21)
    P("s_waitcnt vmcnt(1)")
    P("s_branch L_f1ok")
    P("L_f1slow:")
    G.sp_issue(16)
    P("s_waitcnt vmcnt(4)")
    xsig()
    G.stamp(21)
    G.sp_check(16)
    xs_issue()
    G.stamp(9)
    P("L_f1w:")
    P("s_waitcnt vmcnt(0)")
    P("L_f1ok:")
    P(f"s_mov_b32 {s(sT2)}, {s(sBO)}")
    P(f"v_add_u32 {v(vT)}, {L_XS}, {v(vLA)}")
    P(f"s_mov_b32 {s(sSC)}, {f32(2.0 / (S_ * D_))}")
    G.stamp(22)
    G.swbar(0, 4)
    G.stamp(10)
    P(f"s_cmp_eq_u32 {s(sK)}, 0")
    P("s_cbranch_scc1 L_real")
    P(f"s_cmp_eq_u32 {s(sK)}, 224")
    P("s_cbranch_scc1 L_real1")
    for i in range(8):
        P(f"ds_read_b128 {a(XF + 4 * i, 4)}, {v(vT)} offset:{i * 1024}")
    P("s_branch L_go")
    P("L_real1:")
    P(f"v_add_u32 {v(vT)}, 8, {v(vT)}")
    P("L_real:")
    for i in range(8):
        P(f"ds_read_b64 {a(XF + 4 * i, 2)}, {v(vT)} offset:{i * 1024}")
    for i in range(8):
        P(f"v_accvgpr_write_b32 {a(XF + 4 * i + 2)}, 0")
        P(f"v_accvgpr_write_b32 {a(XF + 4 * i + 3)}, 0")
    P(f"s_mov_b32 {s(sSC)}, {f32(1.0 / (S_ * D_))}")
    P("L_go:")

    def cr(base, i):
        return v(base + 6 * i + 2, 4)

    def ci(base, i):
        return v(base + 6 * i, 4)

    for ks in range(4):
        P(f"s_waitcnt lgkmcnt({6 - 2 * ks})")
        for mt in range(2):
            for d, cm in ((DR, cr), (DI, ci)):
                c = "0" if ks == 0 else v(d + 4 * mt, 4)
                P(f"v_mfma_f32_16x16x32_bf16 {v(d + 4 * mt, 4)}, {a(XF + (ks * 2 + mt) * 4, 4)}, {cm(C64, ks)}, {c}")
    FL.emit(W2P)
    for i in range(8):
        P(f"v_lshlrev_b32 {v(WR + i)}, 16, {v(WD + i)}")
        P(f"v_and_b32 {v(WI + i)}, 0xffff0000, {v(WD + i)}")

    def cmul(c_r, c_i, sgn, swap):
        ng = "neg_lo:[0,1,0] neg_hi:[0,1,0]"
        for i in range(0, 8, 2):
            a_, b_ = TMP + i, TMP + 8 + i
            P(f"v_pk_mul_f32 {v(a_, 2)}, {v(DR + i, 2)}, {v(c_r + i, 2)}")
            P(f"v_pk_mul_f32 {v(b_, 2)}, {v(DI + i, 2)}, {v(c_r + i, 2)}")
            P(f"v_pk_fma_f32 {v(a_, 2)}, {v(DI + i, 2)}, {v(c_i + i, 2)}, {v(a_, 2)} {ng if sgn > 0 else ''}")
            P(f"v_pk_fma_f32 {v(b_, 2)}, {v(DR + i, 2)}, {v(c_i + i, 2)}, {v(b_, 2)} {ng if sgn < 0 else ''}")
        first, second = (TMP + 8, TMP) if swap else (TMP, TMP + 8)
        for mt in range(2):
            for j in range(2):
                P(f"v_cvt_pk_bf16_f32 {v(B2 + 4 * mt + j)}, {v(first + 4 * mt + 2 * j)}, {v(first + 4 * mt + 2 * j + 1)}")
                P(f"v_cvt_pk_bf16_f32 {v(B2 + 4 * mt + 2 + j)}, {v(second + 4 * mt + 2 * j)}, {v(second + 4 * mt + 2 * j + 1)}")

    cmul(T1C, T1S, -1, False)
    for ks in range(2):
        for mt in range(2):
            for d, em in ((DR, cr), (DI, ci)):
                c = "0" if ks == 0 else v(d + 4 * mt, 4)
                P(f"v_mfma_f32_16x16x32_bf16 {v(d + 4 * mt, 4)}, {em(E32, mt * 2 + ks)}, {v(B2 + 4 * ks, 4)}, {c}")
    FL.emit(W2P)
    for i in range(8):
        P(f"v_mul_f32 {v(GG + i)}, {s(sSC)}, {v(GG + i)}")
    cmul(WR, WI, +1, True)
    for ks in range(2):
        for nt in range(2):
            for d, em in ((DI, cr), (DR, ci)):
                c = "0" if ks == 0 else v(d + 4 * nt, 4)
                P(f"v_mfma_f32_16x16x32_bf16 {v(d + 4 * nt, 4)}, {v(B2 + 4 * ks, 4)}, {em(E32, nt * 2 + ks)}, {c}")
    FL.emit(W2P)
    P(f"s_lshl_b32 {s(sT0)}, {s(sW)}, 11")
    P(f"v_add_u32 {v(vT)}, {L_EX}, {v(vLA)}")
    P(f"v_add_u32 {v(vB)}, {s(sT0)}, {v(vT)}")
    cmul(T2C, T2S, +1, True)
    P(f"ds_write_b128 {v(vB)}, {v(B2, 4)}")
    P(f"ds_write_b128 {v(vB)}, {v(B2 + 4, 4)} offset:1024")
    G.arrive(1)
    f3_addr()
    G.check(1, 4)
    for i in range(8):
        P(f"ds_read_b128 {a(XF + 4 * i, 4)}, {v(vT)} offset:{i * 1024}")
    for ks in range(4):
        P(f"s_waitcnt lgkmcnt({6 - 2 * ks})")
        for nt in range(2):
            for d, cm in ((DI, cr), (DR, ci)):
                c = "0" if ks == 0 else v(d + 4 * nt, 4)
                P(f"v_mfma_f32_16x16x32_bf16 {v(d + 4 * nt, 4)}, {cm(C64, ks)}, {a(XF + (ks * 2 + nt) * 4, 4)}, {c}")
    P(f"s_add_u32 {s(sT2)}, {s(sT2)}, {WS_V}")
    P(f"s_lshl_b32 {s(sFL)}, {s(sW)}, 8")
    P(f"s_add_u32 {s(sFL)}, {s(sFL)}, {s(sK)}")
    P(f"s_mul_i32 {s(sFL)}, {s(sFL)}, {FS}")
    P(f"s_add_u32 {s(sFL)}, {s(sFL)}, {WS_F4}")
    act_base()
    for i in range(0, 8, 2):
        P(f"v_pk_mul_f32 {v(DR + i, 2)}, {v(DR + i, 2)}, {v(GG + i, 2)}")
        P(f"v_pk_mul_f32 {v(DI + i, 2)}, {v(DI + i, 2)}, {v(GG + i, 2)}")
    for nt in range(2):
        for r in range(4):
            P(f"v_cvt_pk_bf16_f32 {v(B2 + 4 * nt + r)}, {v(DR + 4 * nt + r)}, {v(DI + 4 * nt + r)}")
        P(f"buffer_store_dwordx4 {v(B2 + 4 * nt, 4)}, {v(vLA)}, {s(WS_, 4)}, {s(sT2)} offen offset:{nt * 1024} sc1")
    vm.add("vst", 2)
    G.stamp(11)
    P(f"s_cmp_ge_u32 {s(sJ7)}, 4")
    P("s_cbranch_scc0 L_p3")
    P("s_waitcnt vmcnt(0)")
    G.signal(s(sFL), g="")
    P("s_branch L_fin")
    P("L_p3:")
    P(f"s_add_u32 {s(sWO)}, {s(sWO)}, {256 * 896}")
    mg = m_frags(VF)
    run(mg[:XM1])
    G.wvm("vst")
    G.signal(s(sFL))
    G.check(3, 4)
    for st in range(6):
        rd_w2(st)
    run(mg[XM1:])
    P("s_waitcnt lgkmcnt(0)")
    G.sp_issue(8)
    for st in range(8, 14):
        issue_w2(st, 0)
        issue_w2(st, 1)
    G.stamp(23)
    G.sp_check(8)
    P("L_ffn:")
    vm.clear()
    lg.clear()
    for st in range(8, 14):
        vm.add(("w2", st), 0)
    G.stamp(12)
    for st in range(DEPTH):
        issue_act(st)
    g0 = vB
    VR = 160

    def v_all():
        P(f"v_lshlrev_b32 {v(vT)}, 2, {v(vM)}")
        P(f"s_lshl_b32 {s(sXO)}, {s(sRB64)}, 8")
        P(f"s_add_u32 {s(sT1)}, {s(sXO)}, {WS_G}")
        for nt in range(2):
            P(f"buffer_load_dword {v(g0 + nt)}, {v(vT)}, {s(WS_, 4)}, {s(sT1)} offen offset:{128 * nt} sc1")
        vm.add("g", 2)
        P(f"v_lshlrev_b32 {v(vT)}, 13, {v(vG4)}")
        P(f"v_lshl_add_u32 {v(vT)}, {v(vN)}, 4, {v(vT)}")
        P(f"s_lshl_b32 {s(sT2)}, {s(sW)}, 18")
        P(f"s_add_u32 {s(sXO)}, {s(sXO)}, {s(sT2)}")
        for i in range(4):
            for half in range(2):
                P(f"s_add_u32 m0, {s(sLW)}, {((i + 6) & 7) * 8192 + half * 1024}")
                P(f"buffer_load_dwordx4 {v(vT)}, {s(V_, 4)}, {s(sXO)} offen sc1 lds")
                P(f"s_add_u32 {s(sXO)}, {s(sXO)}, {4 * 8192}")
                vm.add(("v", i))

    def f_after(st):
        if st == F4_AT:
            P(f"s_lshl_b32 {s(sT1)}, {s(sW)}, 5")
            P(f"v_add_u32 {v(vPA)}, {s(sT1)}, {v(vM)}")
            P(f"v_min_u32 {v(vPA)}, 224, {v(vPA)}")
            P(f"s_lshr_b32 {s(sT1)}, {s(sRB64)}, 3")
            P(f"s_lshl_b32 {s(sT1)}, {s(sT1)}, 8")
            P(f"s_add_u32 {s(sT1)}, {s(sT1)}, {WS_F4 // FS}")
            P(f"v_add_u32 {v(vPA)}, {s(sT1)}, {v(vPA)}")
            P(f"v_mul_u32_u24 {v(vPA)}, {FS}, {v(vPA)}")
            G.poll_issue()

    ffn_loop(f_after, hi=VCHK + 1)
    assert F4_AT <= VCHK and VCHK >= 9 and VCHK + DEPTH >= 13
    G.stamp(18)
    G.wvm("poll")
    P(f"v_cmp_ne_u32 vcc, {s(sTAG)}, {v(vPR)}")
    P("s_cbranch_vccz L_vfast")
    sv = ({k: list(q) for k, q in vm.q.items()}, {k: list(q) for k, q in lg.q.items()})
    ffn_loop(lo=VCHK + 1)
    G.poll_issue()
    G.poll_check()
    G.stamp(14)
    v_all()
    P("s_branch L_vjoin")
    P("L_vfast:")
    vm.q, lg.q = sv
    v_all()
    ffn_loop(lo=VCHK + 1)
    P("L_vjoin:")
    G.stamp(13)
    og = vB + 2
    va = vTW
    P(f"v_lshl_add_u32 {v(va)}, {v(vM)}, 2, {s(sLW)}")
    P(f"v_lshl_add_u32 {v(va)}, {v(vH)}, 10, {v(va)}")
    P(f"v_add_u32 {v(va + 1)}, 128, {v(va)}")
    wa = TMP
    P(f"v_add_u32 {v(wa)}, {s(sLW)}, {v(vLA)}")
    for c in range(1, 4):
        P(f"v_xor_b32 {v(wa + c)}, {64 * c}, {v(wa)}")
    G.wvm("g")
    for nt in range(2):
        P(f"v_sub_f32 {v(og + nt)}, 1.0, {v(g0 + nt)}")
        P(f"v_cvt_pk_bf16_f32 {v(og + nt)}, {v(og + nt)}, {v(og + nt)}")
        P(f"v_lshlrev_b32 {v(og + nt)}, 16, {v(og + nt)}")
        P(f"v_add_f32 {v(og + nt)}, {v(og + nt)}, {v(og + nt)}")

    def scale(ti):
        return [f"v_mul_f32 {v(AC3 + ti * 16 + r)}, {v(AC3 + ti * 16 + r)}, {v(og + (ti & 1))}" for r in range(16)]

    for i in range(4):
        G.wvm(("v", i))
        off = ((i + 6) & 7) * 32
        for nt in range(2):
            for j in range(2):
                P(f"ds_read2st64_b32 {v(VR + 8 * i + 4 * nt + 2 * j, 2)}, {v(va + nt)} offset0:{off + 2 * j} offset1:{off + 2 * j + 1}")
        run(scale(i))
    P("s_waitcnt lgkmcnt(0)")
    G.stamp(15)

    def wr_tile(ti):
        return [f"ds_write_b128 {v(wa + c)}, {v(AC3 + ti * 16 + 4 * c, 4)} offset:{(2 * ti + (c >> 1)) * 8192 + (c & 1) * 1024}" for c in range(4)]

    pend = []
    for ti in range(4):
        dt, nt = ti >> 1, ti & 1
        d = v(AC3 + ti * 16, 16)
        for i in range(4):
            P(f"v_mfma_f32_32x32x16_bf16 {d}, {v(MF + (i * 2 + dt) * 4, 4)}, {v(VR + 8 * i + 4 * nt, 4)}, {d}")
            if i >= 2:
                run(pend[:2])
                pend = pend[2:]
        pend = wr_tile(ti)
    run(pend)
    P(f"s_lshl_b32 {s(sT1)}, {s(sJM)}, 7")
    P("s_waitcnt lgkmcnt(0)")
    P("s_barrier")
    G.stamp(16)
    R = AC3
    for ww in range(8):
        for h in range(2):
            P(f"ds_read_b128 {v(R + ww * 8 + 4 * h, 4)}, {v(ra + (1 if ww < 4 else 0))} offset:{(ww & 3) * 2048 + h * 512}")
    P("s_waitcnt lgkmcnt(8)")
    for r in range(0, 8, 2):
        P(f"v_pk_add_f32 {v(R + r, 2)}, {v(R + r, 2)}, {v(R + 8 + r, 2)}")
        P(f"v_pk_add_f32 {v(R + 16 + r, 2)}, {v(R + 16 + r, 2)}, {v(R + 24 + r, 2)}")
        P(f"v_pk_add_f32 {v(R + r, 2)}, {v(R + r, 2)}, {v(R + 16 + r, 2)}")
    P("s_waitcnt lgkmcnt(0)")
    for r in range(0, 8, 2):
        P(f"v_pk_add_f32 {v(R + 32 + r, 2)}, {v(R + 32 + r, 2)}, {v(R + 40 + r, 2)}")
        P(f"v_pk_add_f32 {v(R + 48 + r, 2)}, {v(R + 48 + r, 2)}, {v(R + 56 + r, 2)}")
        P(f"v_pk_add_f32 {v(R + 32 + r, 2)}, {v(R + 32 + r, 2)}, {v(R + 48 + r, 2)}")
        P(f"v_pk_add_f32 {v(R + r, 2)}, {v(R + r, 2)}, {v(R + 32 + r, 2)}")
    for i in range(4):
        P(f"v_cvt_pk_bf16_f32 {v(R + 8 + i)}, {v(R + 2 * i)}, {v(R + 2 * i + 1)}")
    P(f"buffer_store_dwordx4 {v(R + 8, 4)}, {v(oa)}, {s(OUT_, 4)}, {s(sT1)} offen")
    P(f"s_add_u32 {s(sT0)}, s2, {s(sW)}")
    P(f"s_cmp_eq_u32 {s(sT0)}, 0")
    P("s_cbranch_scc0 L_fin")
    P(f"s_mov_b32 {s(sT0)}, {WS_EP}")
    G.signal(s(sT0))
    P("s_branch L_fin")

    P("L_y1:")
    vm.q = y_vm
    lg.clear()
    rd_setup()
    run(stage(2))
    G.stamp(3)

    def y_bar(n):
        assert vm.has(("st", n))
        P(f"s_waitcnt vmcnt({vm.n(('st', n))}) lgkmcnt(0)")
        P("s_barrier")
        if n < 7:
            rdx(n)
        if n + 3 < NSTG:
            run(stage(n + 3))
        if n == 7:
            FL.add([(lambda st=st, hf=hf: issue_w2(st, hf)) for st in range(8) for hf in range(2)])

    for n in range(LAG):
        y_bar(n)
        if n == 0:
            G.stamp(4)
            ptr_setup()
        if n == 1:
            run(late_setup())
    tag_ready()
    bias_mfma(True)
    if YPRIO:
        P(f"s_setprio {YPRIO}")
    y_bar(LAG)
    G.stamp(5)
    for t in range(2):
        w1_rd(t, 0)
        w1_rd(t, 1)
    ybar_at = {4 * i - 2: LAG + i for i in range(1, 8 - LAG)}
    chk = {4 * grp[0] - 2: j for j, grp in enumerate(LATE[LAG][1:])}
    arr = {t - YEARLY: j for t, j in chk.items()}
    t7 = max(0, 4 * (7 - LAG) - 2)
    nslots = 2 * (28 - t7)
    done = 0
    for t in range(28):
        if t in ybar_at:
            y_bar(ybar_at[t])
            G.stamp(6)
        if t in arr:
            G.wvm(("st", 8 + arr[t]))
            G.arrive(6 + arr[t])
            lg.add("arr")
        if t in chk:
            sv = {k: list(q) for k, q in lg.q.items()}
            G.check(6 + chk[t], 4)
            lg.q = sv
            G.stamp(17 + chk[t])
        for dt in range(2):
            G.wlg(("b", t, dt))
            d = v(ACC + 16 * dt, 16)
            P(f"v_mfma_f32_32x32x16_bf16 {d}, {v(yw(t) + 4 * dt, 4)}, {xreg(t)}, {d}")
            if t + 2 < 28:
                w1_rd(t + 2, dt)
            if t >= t7:
                want = (2 * (t - t7) + dt + 1) * YW2 // nslots
                while done < want:
                    FL.emit(1)
                    done += 1
    G.stamp(7)
    G.arrive(2)
    if YPRIO:
        P("s_setprio 0")
    FL.drain()
    P(f"s_add_u32 {s(sT2)}, {s(sLW)}, 0x10000")
    P(f"s_sub_u32 {s(sXO)}, {s(sWO)}, {(256 - 64) * 896}")
    wx = [(lambda st=st, hf=hf: issue_w2(st, hf, sT2, sXO, "w2x")) for st in range(8) for hf in range(2)]
    for fs in range(4):
        m = mish(fs)
        if fs == 0:
            run(m)
            G.stamp(21)
            G.check(2, 4)
            G.stamp(22)
        else:
            per = len(m) // (NX + 1) + 1
            for i in range(0, len(m), per):
                if i and wx:
                    wx.pop(0)()
                run(m[i:i + per])
    G.stamp(8)
    lg.clear()
    G.wvm(("w2", 5))
    for st in range(6):
        rd_w2(st)
    f3_addr()
    act_base()
    mg = m_frags(VF)
    run(wx[:WXA])
    run(mg[:YM1])
    G.wvm("act")
    G.signal(s(sFL))
    G.stamp(9)
    run(wx[WXA:])
    P("s_waitcnt lgkmcnt(0)")
    rf = [(lambda st=st, hf=hf: issue_w2(st, hf)) for st in range(8, 14) for hf in range(2)]
    run(rf)
    G.sp_issue(8)
    G.stamp(10)
    red_setup()
    run(mg[YM1:])
    G.stamp(11)
    G.wvm(("w2x", 7))
    G.arrive(3)
    G.sp_check(8)
    P("s_branch L_ffn")

    P("L_side:")
    sU = sRB
    P(f"s_sub_u32 {s(sU)}, s2, 224")
    P(f"s_cmp_lg_u32 {s(sCH)}, 0")
    P("s_cbranch_scc1 L_gate")
    P(f"s_and_b32 {s(sT0)}, {s(sU)}, 7")
    P(f"s_lshl_b32 {s(sT0)}, {s(sT0)}, 2")
    P(f"s_add_u32 {s(sT0)}, {s(sT0)}, {s(sRG)}")
    P(f"s_lshl_b32 {s(sT0)}, {s(sT0)}, 2")
    P(f"s_lshr_b32 {s(sT1)}, {s(sU)}, 3")
    P(f"s_add_u32 {s(sT0)}, {s(sT0)}, {s(sT1)}")
    P(f"s_mul_i32 {s(sXO)}, {s(sT0)}, 7200")
    P(f"s_add_u32 {s(sT1)}, {s(sXO)}, 4096")
    P(f"s_lshl_b32 {s(sT0)}, {s(sRG)}, 13")
    P("s_waitcnt lgkmcnt(0)")
    G.stamp(2)
    G.srd(WR_, 6, S_ * 225 * 2)
    G.srd(WI_, 8, S_ * 225 * 2)
    for arr, sr in ((0, WR_), (1, WI_)):
        for half in range(2):
            P(f"s_add_u32 m0, {s(sT0)}, {arr * 32768 + half * 4096}")
            for i in range(4):
                if half == 1 and i == 3:
                    P("s_mov_b64 exec, 3")
                P(f"buffer_load_dwordx4 {v(vLA)}, {s(sr, 4)}, {s(sT1 if half else sXO)} offen offset:{i * 1024} lds")
            P("s_mov_b64 exec, -1")
    P(f"s_load_dword {s(sTAG)}, s[24:25], {WS_EP}")
    G.srd(WS_, 24, WS_END)
    la, ga_, o = TMP, TMP + 1, 64
    P(f"s_lshl_b32 {s(sT0)}, {s(sRG)}, 2")
    P(f"v_add_u32 {v(TMP + 2)}, {s(sT0)}, {v(vG4)}")
    P(f"v_mul_u32_u24 {v(la)}, 450, {v(vN)}")
    P(f"v_lshl_add_u32 {v(la)}, {v(TMP + 2)}, 1, {v(la)}")
    P(f"v_lshlrev_b32 {v(ga_)}, 13, {v(TMP + 2)}")
    P(f"v_lshl_add_u32 {v(ga_)}, {v(vN)}, 4, {v(ga_)}")
    P(f"s_lshl_b32 {s(sT0)}, {s(sU)}, 8")
    P(f"s_add_u32 {s(sT0)}, {s(sT0)}, {WS_WT}")
    P("s_barrier")
    P("s_waitcnt vmcnt(0) lgkmcnt(0)")
    P(f"s_mul_i32 {s(sTAG)}, {s(sTAG)}, 1664525")
    P(f"s_add_u32 {s(sTAG)}, {s(sTAG)}, 1013904223"); P(f"s_mov_b32 {s(sTG2)}, {s(sTAG)}"); P(f"s_mov_b32 {s(sTG2 + 1)}, {s(sTAG)}")
    G.swbar(5, 4)
    G.stamp(3)

    def wt_rd(i):
        b = o + 8 * (i % 8)
        for r in range(4):
            P(f"ds_read_u16 {v(b + r)}, {v(la)} offset:{r * 8192 + 32 * i}")
            P(f"ds_read_u16 {v(b + 4 + r)}, {v(la)} offset:{32768 + r * 8192 + 32 * i}")

    wt_rd(0)
    for i in range(15):
        if i == 14:
            P(f"s_cmp_lg_u32 {s(sRG)}, 0")
            P("s_cbranch_scc1 L_wtdone")
        if i + 1 < 15:
            wt_rd(i + 1)
        P(f"s_waitcnt lgkmcnt({8 if i < 14 else 0})")
        b = o + 8 * (i % 8)
        for r in range(4):
            P(f"v_lshl_or_b32 {v(b + r)}, {v(b + 4 + r)}, 16, {v(b + r)}")
        P(f"buffer_store_dwordx4 {v(b, 4)}, {v(ga_)}, {s(WS_, 4)}, {s(sT0)} offen sc1")
        P(f"s_add_u32 {s(sT0)}, {s(sT0)}, {16 * 8192}")
    P("L_wtdone:")
    G.stamp(4)
    P("s_waitcnt lgkmcnt(0)")
    P(f"s_cmp_eq_u32 {s(sU)}, 0")
    P("s_cbranch_scc0 L_nocs")
    for ins in p2_consts(TMP):
        P(ins)
    P("L_nocs:")
    P("s_waitcnt vmcnt(0)")
    P("s_barrier")
    G.stamp(5)
    P(f"s_cmp_eq_u32 {s(sW)}, 0")
    P("s_cbranch_scc0 L_sig2")
    P(f"s_mul_i32 {s(sT0)}, {s(sU)}, {FS}")
    P(f"s_add_u32 {s(sT0)}, {s(sT0)}, {WS_F2}")
    G.signal(s(sT0))
    P("L_sig2:")
    P(f"s_cmp_eq_u32 {s(sU)}, 0")
    P("s_cbranch_scc0 L_fin")
    P(f"s_mov_b32 {s(sK)}, 224")
    f1_addr()
    G.poll_issue()
    G.sp_issue(16)
    P("s_waitcnt vmcnt(0)")
    P("s_branch L_p2")

    P("L_gate:")
    P(f"v_mov_b32 {v(t0)}, 0")
    P(f"v_lshlrev_b32 {v(t1)}, 2, {v(vL)}")
    P(f"v_add_u32 {v(t1)}, {L_SY}, {v(t1)}")
    P(f"ds_write_b32 {v(t1)}, {v(t0)}")
    XG, GW = 64, 128
    oa = TMP + 4
    P(f"s_lshl_b32 {s(sT0)}, {s(sU)}, 6")
    P(f"s_lshl_b32 {s(sT1)}, {s(sRG)}, 4")
    P(f"s_add_u32 {s(sT2)}, {s(sT0)}, {s(sT1)}")
    P(f"v_lshrrev_b32 {v(oa + 1)}, 3, {v(vL)}")
    P(f"v_add_u32 {v(oa + 1)}, {s(sT2)}, {v(oa + 1)}")
    row_of_p(P, oa, oa + 1, oa + 2)
    P(f"v_and_b32 {v(vT)}, 7, {v(vL)}")
    P(f"v_lshlrev_b32 {v(vT)}, 4, {v(vT)}")
    P(f"v_add_u32 {v(oa)}, {v(oa)}, {v(vT)}")
    P("s_waitcnt lgkmcnt(0)")
    P("s_barrier")
    G.stamp(2)
    G.srd(X_, 4, S_ * D_ * 2)
    G.srd(B1_, 18, D_ * 2)
    G.srd(WS_, 24, WS_END)
    G.srd(W2_, 16, F_ * D_ * 2)
    for i in range(7):
        P(f"buffer_load_dwordx4 {v(GW + 4 * i, 4)}, {v(vT)}, {s(B1_, 4)}, 0 offen offset:{i * 128}")
        for hh in range(2):
            P(f"buffer_load_dwordx4 {v(XG + 28 * hh + 4 * i, 4)}, {v(oa)}, {s(X_, 4)}, 0 offen offset:{i * 128 + hh * 1792}")
    z, xa2, ga2 = TMP + 16, TMP + 8, TMP + 12
    P(f"s_mov_b32 {s(sT1)}, 0xffff0000")
    for j in range(4):
        P(f"v_mov_b32 {v(z + j)}, 0")
    for i in range(28):
        if i % 4 == 0:
            P(f"s_waitcnt vmcnt({18 - 3 * (i // 4)})")
        P(f"v_lshlrev_b32 {v(ga2)}, 16, {v(GW + i)}")
        P(f"v_and_b32 {v(ga2 + 1)}, {s(sT1)}, {v(GW + i)}")
        for hh in range(2):
            xx, pp = xa2 + 2 * hh, ga2 + 2 + hh
            P(f"v_lshlrev_b32 {v(xx)}, 16, {v(XG + 28 * hh + i)}")
            P(f"v_and_b32 {v(xx + 1)}, {s(sT1)}, {v(XG + 28 * hh + i)}")
            P(f"v_pk_mul_f32 {v(xx, 2)}, {v(xx, 2)}, {v(ga2, 2)}")
            P(f"v_cvt_pk_bf16_f32 {v(pp)}, {v(xx)}, {v(xx + 1)}")
            P(f"v_lshlrev_b32 {v(xx)}, 16, {v(pp)}")
            P(f"v_and_b32 {v(xx + 1)}, {s(sT1)}, {v(pp)}")
            P(f"v_pk_add_f32 {v(z + 2 * hh, 2)}, {v(z + 2 * hh, 2)}, {v(xx, 2)}")
    P(f"v_lshlrev_b32 {v(vT)}, 2, {v(oa + 1)}")
    P(f"s_mov_b32 {s(sT0)}, {WS_G}")
    for hh in range(2):
        y = z + 2 * hh
        P(f"v_add_f32 {v(y)}, {v(y)}, {v(y + 1)}")
        P(f"v_add_f32_dpp {v(y)}, {v(y)}, {v(y)} quad_perm:[1,0,3,2] row_mask:0xf bank_mask:0xf")
        P(f"v_add_f32_dpp {v(y)}, {v(y)}, {v(y)} quad_perm:[2,3,0,1] row_mask:0xf bank_mask:0xf")
        P(f"v_add_f32_dpp {v(y)}, {v(y)}, {v(y)} row_half_mirror row_mask:0xf bank_mask:0xf")
        P(f"v_cvt_pk_bf16_f32 {v(y)}, {v(y)}, {v(y)}")
        P(f"v_lshlrev_b32 {v(y)}, 16, {v(y)}")
        P(f"v_mul_f32 {v(y)}, {f32(-LOG2E)}, {v(y)}")
        P(f"v_exp_f32 {v(y)}, {v(y)}")
        P(f"v_add_f32 {v(y)}, 1.0, {v(y)}")
        P(f"v_rcp_f32 {v(y)}, {v(y)}")
        P(f"v_cvt_pk_bf16_f32 {v(y)}, {v(y)}, {v(y)}")
        P(f"v_lshlrev_b32 {v(y)}, 16, {v(y)}")
        P(f"buffer_store_dword {v(y)}, {v(vT)}, {s(WS_, 4)}, {s(sT0)} offen offset:{32 * hh} sc1")
    G.stamp(4)
    P("s_waitcnt vmcnt(0)")
    P("s_barrier")
    G.stamp(5)
    if PW2B:
        P(f"s_cmp_eq_u32 {s(sU)}, 0")
        P("s_cbranch_scc1 L_fin")
        P(f"s_sleep {PWS}")
        P(f"v_lshlrev_b32 {v(vPA)}, 7, {v(vL)}")
        P(f"s_lshl_b32 {s(sBO)}, {s(sJM)}, 2")
        P(f"s_add_u32 {s(sBO)}, {s(sBO)}, {s(sRG)}")
        P(f"s_min_u32 {s(sBO)}, {s(sBO)}, 13")
        P(f"s_mul_i32 {s(sBO)}, {s(sBO)}, {128 * 896}")
        P(f"s_add_u32 {s(sBO)}, {s(sBO)}, {64 * 896}")
        for i in range(PW2B):
            P(f"buffer_load_dword {v(vEP)}, {v(vPA)}, {s(W2_, 4)}, {s(sBO)} offen")
            P(f"s_add_u32 {s(sBO)}, {s(sBO)}, 8192")

    P("L_fin:")
    if AMP:
        P("s_waitcnt vmcnt(0)")
        G.stamp(24)
        P("s_cmp_eq_u32 s2, 8")
        P("s_cbranch_scc0 L_end")
        P(f"s_cmp_eq_u32 {s(sW)}, {AMP[2] if len(AMP) > 2 else 0}")
        P("s_cbranch_scc0 L_end")
        P("s_sub_u32 s96, s96, s94")
        P("s_lshr_b32 s96, s96, 1" if "ampcyc" in OPT else "s_mul_i32 s96, s96, 10")
        P("s_memrealtime s[98:99]")
        P("s_waitcnt lgkmcnt(0)")
        P("s_add_u32 s96, s96, s98")
        P("L_amp:")
        P("s_memrealtime s[98:99]")
        P("s_waitcnt lgkmcnt(0)")
        P("s_sub_u32 s97, s98, s96")
        P("s_cmp_lt_i32 s97, 0")
        P("s_cbranch_scc1 L_amp")
    if STAMP:
        P("s_waitcnt vmcnt(0)")
        G.stamp(24)
        G.stamp(25, True)
        P(f"s_getreg_b32 {s(sT0)}, hwreg(HW_REG_XCC_ID)")
        P(f"v_writelane_b32 v31, {s(sT0)}, 31")
        P(f"s_getreg_b32 {s(sT0)}, hwreg(HW_REG_HW_ID)")
        P(f"v_writelane_b32 v31, {s(sT0)}, 32")
        G.srd(X_, 24, 1 << 20, WS_TS)
        P(f"s_lshl_b32 {s(sT0)}, s2, 3")
        P(f"s_add_u32 {s(sT0)}, {s(sT0)}, {s(sW)}")
        P(f"s_lshl_b32 {s(sT0)}, {s(sT0)}, 8")
        P(f"v_lshlrev_b32 v1, 2, v1")
        P(f"buffer_store_dword v31, v1, {s(X_, 4)}, {s(sT0)} offen")
    P("L_end:")
    P("s_endpgm")
    G.P.resolve()
    out = HEADER
    out += f"; @launch grid=(256,1,1) block=(512,1,1) lds={LDS}\n"
    out += '.amdgcn_target "amdgcn-amd-amdhsa--gfx950"\n.text\n'
    out += G.P.text()
    out += f""".section .rodata,"a"
.p2align 6
.amdhsa_kernel {K}
  .amdhsa_next_free_vgpr 256
  .amdhsa_next_free_sgpr 102
  .amdhsa_accum_offset 192
  .amdhsa_group_segment_fixed_size 0
  .amdhsa_kernarg_size 88
  .amdhsa_user_sgpr_count 2
  .amdhsa_user_sgpr_kernarg_segment_ptr 1
  .amdhsa_system_sgpr_workgroup_id_x 1
.end_amdhsa_kernel
"""
    return out


def main():
    global STAMP, AMP
    if "--amp" in sys.argv:
        i = sys.argv.index("--amp")
        AMP = [int(x) for x in sys.argv[i + 1].split(",")]
        del sys.argv[i:i + 2]
    if "--stamp" in sys.argv:
        STAMP = True
        sys.argv.remove("--stamp")
    for x in list(sys.argv):
        if x.startswith("+"):
            OPT.add(x[1:])
            sys.argv.remove(x)
        elif "=" in x:
            k, val = x.split("=")
            globals()[k] = int(val)
            sys.argv.remove(x)
    out = build()
    path = sys.argv[1] if len(sys.argv) > 1 else f"cdna_kernels/{NAME}.s"
    open(path, "w").write(out)


if __name__ == "__main__":
    main()
```
